```python
import torch

def _softmax(x, axis=-1):
    return torch.softmax(x, dim=axis)
def _gelu(x):
    return torch.nn.functional.gelu(x, approximate="tanh")
def _silu(x):
    return torch.nn.functional.silu(x)
def _sigmoid(x):
    return torch.sigmoid(x)
def _layernorm(x, axis=-1, eps=1e-5):
    m = x.mean(dim=axis, keepdim=True)
    v = x.var(dim=axis, keepdim=True, unbiased=False)
    return (x - m) / torch.sqrt(v + eps)
def _scatter_add(tgt, idx, src, axis=0):
    return tgt.clone().index_add_(axis, idx, src)
def _segment_sum(src, seg, n):
    out = torch.zeros((n,) + src.shape[1:], dtype=src.dtype)
    return out.index_add_(0, seg, src)
def _pad(x, pw):
    flat = tuple(v for pair in reversed(pw) for v in pair)
    return torch.nn.functional.pad(x, flat)

kernel_name = 'interleave_layers__linear_kernel_hedgehog__linear_kernel_hedgehog__prompt'

def setup_inputs():

    _w = (lambda a: (lambda t: t.to(torch.bfloat16) if t.is_floating_point() else t)(torch.as_tensor(a)))
    def _A_setup():
        B, S, D, H = 1, 2048, 512, 32
        Dh = D // H
        return {
            "x": _w((lambda *s: torch.randn(*s, dtype=torch.bfloat16) * 0.1)(B, S, D)),
            "wqkv": _w((lambda *s: torch.randn(*s, dtype=torch.bfloat16) * 0.4)(D, 3 * D)),
            "w_phi": _w((lambda *s: torch.randn(*s, dtype=torch.bfloat16) * 0.4)(H, Dh, Dh) * (Dh ** -0.5)),
            "wo": _w((lambda *s: torch.randn(*s, dtype=torch.bfloat16) * 0.1)(D, D)),
        }
    _A_in = _A_setup()

    def _B_setup():
        B, S, D, H = 1, 2048, 512, 32
        Dh = D // H
        return {
            "x": _w((lambda *s: torch.randn(*s, dtype=torch.bfloat16) * 0.1)(B, S, D)),
            "wqkv": _w((lambda *s: torch.randn(*s, dtype=torch.bfloat16) * 0.8)(D, 3 * D)),
            "w_phi": _w((lambda *s: torch.randn(*s, dtype=torch.bfloat16) * 0.8)(H, Dh, Dh) * (Dh ** -0.5)),
            "wo": _w((lambda *s: torch.randn(*s, dtype=torch.bfloat16) * 0.1)(D, D)),
        }
    _B_in = _B_setup()

    return {
        "A_x": _A_in["x"],
        "A_wqkv": _A_in["wqkv"],
        "A_w_phi": _A_in["w_phi"],
        "A_wo": _A_in["wo"],
        "B_x": _B_in["x"],
        "B_wqkv": _B_in["wqkv"],
        "B_w_phi": _B_in["w_phi"],
        "B_wo": _B_in["wo"],
    }

def reference(A_x, A_wqkv, A_w_phi, A_wo, B_x, B_wqkv, B_w_phi, B_wo):
    def _A_ref(x, wqkv, w_phi, wo):
        B, S, D = x.shape
        H = 32; Dh = D // H
        qkv = (lambda x, *d: x.permute(*d))((x @ wqkv).reshape(B, S, 3, H, Dh), 2, 0, 3, 1, 4)
        q, k, v = qkv[0], qkv[1], qkv[2]
        pq = torch.einsum("bhsd,hdf->bhsf", q, w_phi)
        pk = torch.einsum("bhsd,hdf->bhsf", k, w_phi)
        phi_q = torch.concatenate([_softmax(pq, axis=-1), _softmax(-pq, axis=-1)], axis=-1)
        phi_k = torch.concatenate([_softmax(pk, axis=-1), _softmax(-pk, axis=-1)], axis=-1)
        kv = torch.einsum("bhsf,bhsd->bhfd", phi_k, v)
        z  = torch.einsum("bhsf->bhf", phi_k)
        num = torch.einsum("bhqf,bhfd->bhqd", phi_q, kv)
        den = torch.einsum("bhqf,bhf->bhq", phi_q, z)[..., None] + 1e-6
        o = num / den
        return (lambda x, *d: x.permute(*d))(o, 0, 2, 1, 3).reshape(B, S, D) @ wo

    def _B_ref(x, wqkv, w_phi, wo):
        B, S, D = x.shape
        H = 32; Dh = D // H
        qkv = (lambda x, *d: x.permute(*d))((x @ wqkv).reshape(B, S, 3, H, Dh), 2, 0, 3, 1, 4)
        q, k, v = qkv[0], qkv[1], qkv[2]
        pq = torch.einsum("bhsd,hdf->bhsf", q, w_phi)
        pk = torch.einsum("bhsd,hdf->bhsf", k, w_phi)
        phi_q = torch.concatenate([_softmax(pq, axis=-1), _softmax(-pq, axis=-1)], axis=-1)
        phi_k = torch.concatenate([_softmax(pk, axis=-1), _softmax(-pk, axis=-1)], axis=-1)
        kv = torch.einsum("bhsf,bhsd->bhfd", phi_k, v)
        z  = torch.einsum("bhsf->bhf", phi_k)
        num = torch.einsum("bhqf,bhfd->bhqd", phi_q, kv)
        den = torch.einsum("bhqf,bhf->bhq", phi_q, z)[..., None] + 1e-6
        o = num / den
        return (lambda x, *d: x.permute(*d))(o, 0, 2, 1, 3).reshape(B, S, D) @ wo

    x = A_x
    x = x + _A_ref(_layernorm(x, axis=-1), A_wqkv, A_w_phi, A_wo)
    x = x + _B_ref(_layernorm(x, axis=-1), B_wqkv, B_w_phi, B_wo)
    x = x + _A_ref(_layernorm(x, axis=-1), A_wqkv, A_w_phi, A_wo)
    x = x + _B_ref(_layernorm(x, axis=-1), B_wqkv, B_w_phi, B_wo)
    return x
```

```python
import re
TRANS = ('v_exp_', 'v_log_', 'v_rcp_', 'v_rsq_', 'v_sqrt_', 'v_sin_', 'v_cos_')
def regs(tok):
    tok = tok.strip()
    tok = tok.lstrip('-')
    m = re.fullmatch(r'abs\((.*)\)', tok)
    if m: tok = m.group(1)
    m = re.fullmatch(r'([vas])(\d+)', tok)
    if m: return {(m.group(1), int(m.group(2)))}
    m = re.fullmatch(r'([vas])\[(\d+):(\d+)\]', tok)
    if m: return {(m.group(1), i) for i in range(int(m.group(2)), int(m.group(3)) + 1)}
    if tok == 'vcc': return {('s', 'vcc')}
    if tok == 'm0': return {('s', 'm0')}
    if tok == 'exec': return {('s', 'exec')}
    return set()
class I:
    def __init__(s, text, ln):
        s.text = text; s.ln = ln
        parts = text.split(None, 1)
        s.op = parts[0]
        rest = parts[1] if len(parts) > 1 else ''
        ops = [o.strip() for o in rest.split(',')] if rest else []
        if ops:
            last = ops[-1].split()
        rest2 = re.sub(r'\s+(op_sel|op_sel_hi|neg_lo|neg_hi):\[[^\]]*\]', '', ' ' + rest).strip()
        ops = [o.strip() for o in rest2.split(',')] if rest2 else []
        s.mods = ''
        if ops:
            sp = ops[-1].split(None, 1)
            ops[-1] = sp[0]; s.mods = sp[1] if len(sp) > 1 else ''
        s.ops = ops
        op = s.op
        s.w = set(); s.r = set(); s.kind = 'other'; s.ws = 1
        R = [regs(o) for o in ops]
        if op == 's_nop': s.ws = int(ops[0], 0) + 1
        elif op.startswith('v_mfma'):
            s.kind = 'mfma'; s.passes = 8 if '32x32x16' in op else 4
            s.w = R[0]; s.a = R[1]; s.b = R[2]; s.c = R[3]; s.r = R[1] | R[2] | R[3]
        elif op.startswith('v_'):
            s.kind = 'valu'
            s.trans = op.startswith(TRANS); s.dot = op.startswith('v_dot')
            if op.startswith('v_permlane') or op.startswith('v_swap'):
                s.w = R[0] | R[1]; s.r = R[0] | R[1]
            else:
                s.w = R[0]; s.r = set().union(*R[1:]) if len(R) > 1 else set()
                if op.startswith(('v_fmac', 'v_writelane', 'v_dot2c')): s.r |= R[0]
        elif op.startswith('ds_read'):
            s.kind = 'ds'; s.w = R[0]; s.r = R[1]
        elif op.startswith('ds_write') or op.startswith('ds_add'):
            s.kind = 'ds'; s.r = set().union(*R)
        elif op.startswith('buffer_load') or op.startswith('global_load'):
            s.kind = 'vmem'
            if 'lds' in s.mods.split(): s.r = set().union(*R) | {('s', 'm0')}; s.lds = True
            else: s.w = R[0]; s.r = set().union(*R[1:])
        elif op.startswith(('buffer_store', 'buffer_atomic')):
            s.kind = 'vmem'; s.r = set().union(*R); s.data = R[0]; s.wide = op.endswith(('x3', 'x4'))
        elif op.startswith('s_'):
            s.kind = 'salu'
            if not op.startswith(('s_cmp', 's_cbranch', 's_branch', 's_waitcnt', 's_barrier', 's_endpgm', 's_sleep', 's_setprio', 's_bitcmp')) and R:
                s.w = R[0]; s.r = set().union(*R[1:]) if len(R) > 1 else set()
def need(p, c):
    n = 0
    isv = lambda S: {x for x in S if x[0] in 'va'}
    iss = lambda S: {x for x in S if x[0] == 's'}
    if p.kind == 'valu':
        pw = isv(p.w); ps = iss(p.w)
        if c.kind == 'mfma' and pw & c.r: n = max(n, 3 if p.dot else 2)
        if c.kind == 'valu':
            if c.op.startswith('v_permlane') and pw & c.r: n = max(n, 2)
            if c.op.startswith(('v_readfirstlane', 'v_readlane')) and pw & c.r: n = max(n, 1)
            if p.trans and not c.trans and pw & c.r: n = max(n, 1)
            if ps & c.r: n = max(n, 2)
            if 'dpp' in c.mods or 'row_' in c.mods or 'quad_perm' in c.mods:
                if pw & c.r: n = max(n, 2)
            if p.dot and pw & (c.r | c.w):
                same = c.op == p.op
                srcC = regs(c.ops[3]) if same and len(c.ops) > 3 else set()
                srcAB = (regs(c.ops[1]) | regs(c.ops[2])) if same else set()
                if not same or pw & srcAB: n = max(n, 3)
        if p.dot and c.kind in ('ds', 'vmem') and pw & c.r: n = max(n, 3)
        if c.kind == 'vmem' and ps & c.r: n = max(n, 5)
        if ('s', 'exec') in p.w and c.kind == 'mfma': n = max(n, 4)
    if p.kind == 'salu' and ('s', 'm0') in p.w and c.kind == 'vmem' and getattr(c, 'lds', False): n = max(n, 1)
    if p.kind == 'vmem' and getattr(p, 'wide', False):
        if c.kind in ('valu', 'mfma') and p.data & c.w: n = max(n, 2)
        elif p.data & c.w: n = max(n, 1)
    if p.kind == 'mfma':
        big = p.passes == 8
        if c.kind == 'mfma':
            if p.w & (c.a | c.b): n = max(n, 12 if big else 8)
            if p.w & c.c and not (p.w == c.c and p.passes == c.passes): n = max(n, 10 if big else 6)
            if p.w & c.w and not (p.w == c.c and p.passes == c.passes) and not (p.w & c.c): n = max(n, 12 if big else 8)
        elif c.kind in ('valu', 'ds', 'vmem'):
            if p.w & (c.r | c.w): n = max(n, 12 if big else 8)
            if c.kind == 'valu' and p.c & c.w: n = max(n, 7 if big else 3)
    return n
def check(lines):
    ins = []; labels = {}
    for ln, t in enumerate(lines):
        t = t.split(';')[0].strip()
        if not t or t.startswith('.'): continue
        m = re.fullmatch(r'([\w.$]+):', t)
        if m: labels[m.group(1)] = len(ins); continue
        ins.append(I(t, ln))
    def succ(i):
        x = ins[i]; out = []
        if x.op == 's_endpgm': return out
        if x.op.startswith(('s_branch', 's_cbranch')):
            out.append(labels[x.ops[0]])
            if x.op == 's_branch': return out
        if i + 1 < len(ins): out.append(i + 1)
        return out
    bad = []
    for i, p in enumerate(ins):
        if p.kind not in ('valu', 'mfma', 'salu', 'vmem'): continue
        seen = {}; stack = [(j, 0) for j in succ(i)]
        while stack:
            j, d = stack.pop()
            if d >= 13 or (j in seen and seen[j] <= d): continue
            seen[j] = d
            c = ins[j]; n = need(p, c)
            if n > d: bad.append((p.ln + 1, p.text, c.ln + 1, c.text, n, d))
            for k in succ(j): stack.append((k, d + c.ws))
    return bad
```

```python
import sys, os
sys.path.insert(0, os.path.dirname(__file__))
import hazard

NAME = 'interleave_layers__linear_kernel_hedgehog__linear_kernel_hedgehog__prompt'

XB = 0;          XBS = 0x400000; XBLK = 36864
OB = 0x800000;   OBS = 0x200000; OBLK = 32768
KVB = 0xC00000;  KVS = 0xA0000;  KVBLK = 10240
STAMP = 0x1000000
WS_BYTES = 0x1100000
LK, LV, LQ, LO = 0, 32768, 65536, 98304
SCR = 131072; PS = 2176; RS = 4352
WPH = SCR + 6 * RS; CSP = WPH + 2048
LDS_BYTES = 163840
vL16, vAW, vAQ, vAO, vPHIw, vVw, vPHIr, vVr, vKVFw, vZw, vKVFr, vZld, vL8, vZst, vProbe = range(1, 16)
vC, vRstd, vChk, vStamp = 16, 17, 18, 19
BX = 20; CS = 24; WP = 32; XO = 40; AK = 56; AV = 72; AB = 88; T = 120; X = 128
sWS, sDBG, sOUT, sXI, sWA, sWB, sOA, sOB = 28, 32, 36, 40, 44, 48, 52, 56
sW, sRG, sHP, sL, sMode, sBud, sXCC = 60, 61, 62, 63, 64, 65, 66
sRow = 68
sOff = 72
sXr, sOr, sKVr = 81, 82, 83
sHalf = 84
sT0, sT1, sT2, sT3 = 86, 87, 88, 89
sSel0, sSel1, sOnes = 90, 91, 92
sXwo, sSwo = 93, 94
sTm = 96
sCnt = 98

class G:
    def __init__(s, stamps=False, W=8):
        s.L = []; s.tail = []; s.stamps = stamps; s.W = W; s.nst = 0; s.uid = 0
    def __call__(s, t):
        for x in t.strip('\n').split('\n'):
            x = x.strip()
            if x: s.L.append(x if x.endswith(':') or x.startswith('.') else '    ' + x)
    def ool(s, t):
        for x in t.strip('\n').split('\n'):
            x = x.strip()
            if x: s.tail.append(x if x.endswith(':') or x.startswith('.') else '    ' + x)
    def label(s, p):
        s.uid += 1; return f'L{p}_{s.uid}'
    def stamp(s, idx, perlayer=True):
        if not s.stamps: return
        s(f's_memtime s[{sTm}:{sTm+1}]\ns_waitcnt lgkmcnt(0)')
        if perlayer:
            s(f's_lshl_b32 m0, s{sL}, 4\ns_add_u32 m0, m0, {idx}\ns_nop 0\nv_writelane_b32 v{vStamp}, s{sTm}, m0')
        else:
            s(f'v_writelane_b32 v{vStamp}, s{sTm}, {idx}')
    def modal(s, fn):
        a = s.label('slow'); b = s.label('back')
        s(f's_cmp_lg_u32 s{sMode}, 0\ns_cbranch_scc1 {a}')
        s(fn(''))
        s(f'{b}:')
        s.ool(f'{a}:'); s.ool(fn(' sc1')); s.ool(f's_branch {b}')
    def retry(s, lab, target):
        s.ool(f'{lab}:\ns_sub_u32 s{sBud}, s{sBud}, 1\ns_cbranch_scc1 Lexit\ns_branch {target}')

def v(a, n=1): return f'v{a}' if n == 1 else f'v[{a}:{a+n-1}]'
def a_(a, n=1): return f'a{a}' if n == 1 else f'a[{a}:{a+n-1}]'
def srd(s): return f's[{s}:{s+3}]'
def mfma32(d, a, b, c=None):
    c = v(d, 16) if c is None else c
    return f'v_mfma_f32_32x32x16_bf16 {v(d,16)}, {v(a,4)}, {v(b,4)}, {c}'
def mfma16(d, a, b, c=None):
    c = v(d, 4) if c is None else c
    return f'v_mfma_f32_16x16x32_bf16 {v(d,4)}, {v(a,4)}, {v(b,4)}, {c}'
def trr(d, addr, off): return f'ds_read_b64_tr_b16 {v(d,2)}, v{addr} offset:{off}'
def woff(s, b): return (32 * (s >> 1) + 8 * (s & 1) + 4 * b) * 64
def fragld(j, reg=None):
    reg = X + 4 * j if reg is None else reg
    return f'buffer_load_dwordx4 {v(reg,4)}, v{vL16}, {srd(sWS)}, s{sOff + (j >> 2)} offen offset:{(j & 3) * 1024} sc1'

TILE_LDS = {'k': LK, 'v': LV, 'q': LQ, 'o': LO}
TILE_COL = {'q': 0, 'k': 1024, 'v': 2048}
TILE_IDX = {'k': 0, 'v': 1, 'q': 2, 'o': 3}

def piece_goff(g, t, j):
    if t == 'o':
        g(f's_lshl_b32 s{sT0}, s{sRow + (j >> 1)}, 10')
        g(f's_add_u32 s{sT0}, s{sT0}, s{sT3}')
        if j & 1: g(f's_add_u32 s{sT0}, s{sT0}, {16 * 1024}')
    else:
        g(f's_mul_i32 s{sT0}, s{sRow + (j >> 1)}, 3072')
        g(f's_add_u32 s{sT0}, s{sT0}, s{sT3}')
        g(f's_add_u32 s{sT0}, s{sT0}, {TILE_COL[t] + (j & 1) * 16 * 3072}')

def waddr_setup(g):
    g(f'''
    v_lshrrev_b32 v{T+6}, 6, v{vL16}
    v_and_b32 v{T+5}, 48, v{vL16}
    v_lshl_add_u32 v{T+7}, v{T+6}, 10, v{T+5}
    v_mul_u32_u24 v{T+6}, 3072, v{T+6}
    v_add_u32 v{T+6}, v{T+6}, v{T+5}
    s_lshl_b32 s{sT3}, s{sHP}, 6
    ''')

def dma_piece(g, t, j):
    piece_goff(g, t, j)
    g(f's_lshl_b32 s{sT1}, s{sRow + (j >> 1)}, 6')
    g(f's_add_u32 m0, s{sT1}, {TILE_LDS[t] + (j & 1) * 1024}')
    g(f's_nop 0')
    g(f'buffer_load_dwordx4 v{T+7 if t == "o" else T+6}, {srd(sOA if t == "o" else sWA)}, s{sT0} offen lds')

def stash_load_piece(g, t, j):
    piece_goff(g, t, j)
    r = 128 + 32 * TILE_IDX[t] + 4 * j
    g(f'buffer_load_dwordx4 {a_(r,4)}, v{T+7 if t == "o" else T+6}, {srd(sOB if t == "o" else sWB)}, s{sT0} offen')

def piece_lds_addrs(g, t, base, R):
    for i in range(4):
        g(f's_lshl_b32 s{sT0}, s{sRow + i}, 6')
        g(f's_add_u32 s{sT0}, s{sT0}, {TILE_LDS[t]}')
        g(f'v_add_u32 v{R + i}, s{sT0}, v{base}')

def cs_partial(g, t, typ, R):
    g(f'''
    v_and_b32 v{R+4}, 0x3ff, v{vAW}
    v_lshrrev_b32 v{R+5}, 2, v{vAW}
    v_and_b32 v{R+5}, 0x100, v{R+5}
    v_add_u32 v{R+4}, v{R+4}, v{R+5}
    ''')
    piece_lds_addrs(g, t, R + 4, R)
    D = R + 8
    for j in range(8):
        for b in range(2):
            g(trr(D + 4 * j + 2 * b, R + (j >> 1), (j & 1) * 1024 + b * 512))
        if j == 3: g('s_waitcnt lgkmcnt(0)')
    g(f'v_mov_b32 v{R+4}, 0\nv_mov_b32 v{R+5}, 0')
    g('s_waitcnt lgkmcnt(0)')
    for i in range(32):
        g(f'v_dot2_f32_bf16 v{R+4+(i&1)}, v{D+i}, s{sOnes}, v{R+4+(i&1)}')
    g(f'''
    v_and_b32 v{R+6}, 0x1f0, v{vL16}
    s_lshl_b32 s{sT0}, s{sW}, 2
    s_add_u32 s{sT0}, s{sT0}, {CSP + (typ * 3 + TILE_IDX[t]) * 512}
    v_add_u32 v{R+6}, s{sT0}, v{R+6}
    v_add_f32 v{R+4}, v{R+4}, v{R+5}
    v_mov_b32 v{R+5}, v{R+4}
    s_nop 1
    v_permlane32_swap_b32 v{R+4}, v{R+5}
    v_add_f32 v{R+4}, v{R+4}, v{R+5}
    ds_write_b32 v{R+6}, v{R+4}
    ''')

def cs_read(g, tiles, R):
    g(f'''
    s_and_b32 s{sT0}, s{sL}, 1
    s_mul_i32 s{sT0}, s{sT0}, 1536
    s_add_u32 s{sT0}, s{sT0}, {CSP}
    v_and_b32 v{R}, 0x1f0, v{vL16}
    v_add_u32 v{R}, s{sT0}, v{R}
    ''')
    for i, t in enumerate(tiles):
        g(f'ds_read_b128 {v(R+4+4*i,4)}, v{R} offset:{TILE_IDX[t]*512}')
    g('s_waitcnt lgkmcnt(0)')
    for i, t in enumerate(tiles):
        b = R + 4 + 4 * i
        g(f'''
        v_add_f32 v{b}, v{b}, v{b+1}
        v_add_f32 v{b+2}, v{b+2}, v{b+3}
        v_add_f32 v{b}, v{b}, v{b+2}
        v_cvt_pk_bf16_f32 v{b+1}, v{b}, v{b}
        v_lshlrev_b32 v{b+1}, 16, v{b+1}
        v_sub_f32 v{b+1}, v{b}, v{b+1}
        v_cvt_pk_bf16_f32 v{CS + 2*TILE_IDX[t]}, v{b}, v{b+1}
        ''')

def refill(g, t, lfor, R):
    l1, l2, l3, done = g.label('rf1'), g.label('rf2'), g.label('rf3'), g.label('rfd')
    sa = 32 * TILE_IDX[t]; sb = 128 + sa
    g(f's_cmp_eq_u32 s{sL}, {(4 - lfor) if lfor else 0}\ns_cbranch_scc1 {done}')
    piece_lds_addrs(g, t, vL16, R)
    g(f's_cmp_eq_u32 s{sL}, {1 - lfor}\ns_cbranch_scc1 {l1}')
    g(f's_cmp_eq_u32 s{sL}, {2 - lfor}\ns_cbranch_scc1 {l2}')
    wr = lambda base: '\n'.join(f'ds_write_b128 v{R + (j >> 1)}, {a_(base + 4*j, 4)} offset:{(j & 1) * 1024}' for j in range(8))
    g(wr(sb))
    g(f'{done}:')
    g.ool(f'{l2}:'); g.ool(wr(sa)); g.ool(f's_branch {done}')
    save = g.L; g.L = g.tail
    g(f'{l1}:')
    for j in range(8): g(f'ds_read_b128 {a_(sa + 4*j, 4)}, v{R + (j >> 1)} offset:{(j & 1) * 1024}')
    g('s_waitcnt lgkmcnt(0)')
    g(wr(sb))
    if t != 'o':
        g('s_waitcnt lgkmcnt(0)')
        cs_partial(g, t, 1, R)
    g(f's_branch {done}')
    g.L = save

def softmax2(g, P, D, after=None):
    H = [P, P + 16]; M = [T, T + 2]; S = [T + 4, T + 6]
    for h in range(2):
        p = H[h]; m = M[h]
        g(f'v_max3_f32 v{m}, v{p}, v{p+1}, v{p+2}')
        g(f'v_max3_f32 v{m+1}, v{p+3}, v{p+4}, v{p+5}')
        for i in range(6, 14, 4):
            g(f'v_max3_f32 v{m}, v{p+i}, v{p+i+1}, v{m}')
            g(f'v_max3_f32 v{m+1}, v{p+i+2}, v{p+i+3}, v{m+1}')
        g(f'v_max3_f32 v{m}, v{p+14}, v{p+15}, v{m}')
        g(f'v_max_f32 v{m}, v{m}, v{m+1}')
        g(f'v_mul_f32 v{m}, v{m}, v{vC}')
        for i in range(0, 16, 2):
            g(f'v_pk_fma_f32 {v(p+i,2)}, {v(p+i,2)}, {v(vC,2)}, {v(m,2)} op_sel_hi:[1,0,0] neg_lo:[0,0,1] neg_hi:[0,0,1]')
        for i in range(16): g(f'v_exp_f32 v{p+i}, v{p+i}')
        s_ = S[h]
        g(f'v_pk_add_f32 {v(s_,2)}, {v(p,2)}, {v(p+2,2)}')
        for i in range(4, 16, 2): g(f'v_pk_add_f32 {v(s_,2)}, {v(s_,2)}, {v(p+i,2)}')
        g(f'v_add_f32 v{s_}, v{s_}, v{s_+1}')
        g(f'v_rcp_f32 v{s_}, v{s_}')
        g('s_nop 0')
        for i in range(0, 16, 2):
            g(f'v_pk_mul_f32 {v(p+i,2)}, {v(p+i,2)}, {v(s_,2)} op_sel_hi:[1,0]')
        for i in range(8): g(f'v_cvt_pk_bf16_f32 v{D+8*h+i}, v{p+2*i}, v{p+2*i+1}')
        if after: g(after[h])

def build(stamps=False, W=8):
    g = G(stamps, W)
    hdr = open(os.path.join(os.path.dirname(__file__), '..', 'cdna_kernels', NAME + '.s.ref')).read().split('\n')
    for ln in hdr:
        if ln.startswith('; @launch'): g.L.append(f'; @launch grid=(256,1,1) block=(256,1,1) lds={LDS_BYTES}'); break
        g.L.append(ln)
    g(f'''.amdgcn_target "amdgcn-amd-amdhsa--gfx950"
.text
.globl {NAME}_kernel
.p2align 8
.type {NAME}_kernel,@function
{NAME}_kernel:''')
    g(f'''
    s_cmp_ge_u32 s2, 256
    s_cbranch_scc1 Lexit2
    s_load_dwordx16 s[4:19], s[0:1], 0
    s_load_dwordx4 s[20:23], s[0:1], 64
    s_load_dwordx2 s[24:25], s[0:1], 80
    v_lshrrev_b32 v{T}, 6, v0
    v_and_b32 v0, 63, v0
    v_readfirstlane_b32 s{sW}, v{T}
    s_getreg_b32 s{sXCC}, hwreg(HW_REG_XCC_ID, 0, 4)
    s_and_b32 s{sRG}, s2, 7
    s_lshl_b32 s{sRG}, s{sRG}, 1
    s_lshr_b32 s{sT0}, s2, 7
    s_add_u32 s{sRG}, s{sRG}, s{sT0}
    s_lshr_b32 s{sHP}, s2, 3
    s_and_b32 s{sHP}, s{sHP}, 15
    s_mov_b32 s{sL}, 0
    s_mov_b32 s{sBud}, 0x80000
    s_mov_b32 s{sHalf}, 0
    s_mov_b32 s{sHalf+1}, -1
    s_mov_b32 s{sSel0}, 0x3f80
    s_mov_b32 s{sSel1}, 0x3f800000
    s_mov_b32 s{sOnes}, 0x3f803f80
    v_mov_b32 v{vStamp}, 0
    ''')
    g(f'''
    s_and_b32 s{sT0}, s{sHP}, 1
    s_and_b32 s{sT1}, s{sRG}, 1
    s_lshl_b32 s{sT1}, s{sT1}, 1
    s_add_u32 s{sT0}, s{sT0}, s{sT1}
    s_lshl_b32 s{sT2}, s{sW}, 5
    ''')
    for i in range(4):
        g(f'''
        s_add_u32 s{sT1}, s{sT0}, {i}
        s_and_b32 s{sT1}, s{sT1}, 3
        s_lshl_b32 s{sT1}, s{sT1}, 7
        s_add_u32 s{sRow+i}, s{sT1}, s{sT2}
        ''')
    g(f'''
    s_lshl_b32 s{sT0}, s{sRG}, 2
    s_add_u32 s{sT0}, s{sT0}, s{sW}
    s_mul_i32 s{sXr}, s{sT0}, {XBLK}
    s_lshl_b32 s{sOr}, s{sT0}, 15
    s_add_u32 s{sOr}, s{sOr}, {OB}
    s_lshl_b32 s{sT0}, s{sHP}, 2
    s_add_u32 s{sT0}, s{sT0}, s{sW}
    s_mul_i32 s{sKVr}, s{sT0}, {KVBLK}
    s_add_u32 s{sKVr}, s{sKVr}, {KVB}
    s_lshl_b32 s{sXwo}, s{sHP}, 11
    s_lshr_b32 s{sT0}, s{sHP}, 2
    s_lshl_b32 s{sT0}, s{sT0}, 10
    s_and_b32 s{sT1}, s{sHP}, 3
    s_lshl_b32 s{sT1}, s{sT1}, 2
    s_add_u32 s{sSwo}, s{sT0}, s{sT1}
    s_add_u32 s{sSwo}, s{sSwo}, 32768
    ''')
    tok, half, fh, r_, c_, l2 = T, T+1, T+2, T+3, T+4, T+5
    t0, t1 = AB, AB + 1
    g(f'''
    v_lshlrev_b32 v{vL16}, 4, v0
    v_lshlrev_b32 v{vL8}, 3, v0
    v_and_b32 v{tok}, 31, v0
    v_lshrrev_b32 v{half}, 5, v0
    v_bfe_u32 v{fh}, v0, 4, 1
    v_bfe_u32 v{r_}, v0, 2, 2
    v_and_b32 v{c_}, 3, v0
    v_lshrrev_b32 v{l2}, 2, v0
    v_and_b32 v{t0}, 15, v0
    v_lshrrev_b32 v{t1}, 4, v0
    v_lshlrev_b32 v{t1}, 3, v{t1}
    v_lshl_add_u32 v{vZst}, v{t0}, 5, v{t1}
    v_cmp_lt_u32 vcc, 3, v{t0}
    v_mov_b32 v{t1}, 0x40000000
    v_mov_b32 v{AV}, -1
    v_mov_b32 v{AV+1}, -1
    v_cndmask_b32 v{vZst}, v{vZst}, v{t1}, vcc
    v_mov_b32 v{AV+2}, -1
    v_mov_b32 v{AV+3}, -1
    s_waitcnt lgkmcnt(0)
    ''')
    for s_, p, n in [(sWS, 24, WS_BYTES), (sDBG, 22, 256), (sOUT, 20, 2097152), (sXI, 4, 2097152), (sWA, 6, 1572864),
                     (sWB, 14, 1572864), (sOA, 10, 524288), (sOB, 18, 524288)]:
        g(f's_mov_b32 s{s_}, s{p}\ns_mov_b32 s{s_+1}, s{p+1}\ns_mov_b32 s{s_+2}, {n}\ns_mov_b32 s{s_+3}, 0x20000')
    g.stamp(60, False)
    def clr_x(fl, xoff=0):
        return f'''
        s_add_u32 s{sT0}, s{sT2}, s{sXwo}
        s_add_u32 s{sT1}, s{sT2}, s{sSwo}
        buffer_store_dwordx4 {v(AV,4)}, v{vL16}, {srd(sWS)}, s{sT0} offen{fl}
        buffer_store_dwordx4 {v(AV,4)}, v{vL16}, {srd(sWS)}, s{sT0} offen offset:1024{fl}
        buffer_store_dword v{AV}, v{vL16}, {srd(sWS)}, s{sT1} offen{fl}
        s_add_u32 s{sT0}, s{sT3}, s{sXwo}
        buffer_store_dwordx4 {v(AV,4)}, v{vL16}, {srd(sWS)}, s{sT0} offen{fl}
        buffer_store_dwordx4 {v(AV,4)}, v{vL16}, {srd(sWS)}, s{sT0} offen offset:1024{fl}
        '''
    def kv_store(data, zdata, add):
        return f'''
        s_lshl_b32 s{sT0}, s{sRG}, 9
        s_lshl_b32 s{sT1}, s{sRG}, 7
        s_add_u32 s{sT0}, s{sT0}, s{sKVr}
        s_add_u32 s{sT1}, s{sT1}, s{sKVr}
        s_add_u32 s{sT0}, s{sT0}, {add}
        s_add_u32 s{sT1}, s{sT1}, {add + 8192}
        buffer_store_dwordx2 {v(data,2)}, v{vL8}, {srd(sWS)}, s{sT0} offen sc1
        buffer_store_dwordx2 {v(zdata,2)}, v{vZst}, {srd(sWS)}, s{sT1} offen sc1
        '''
    g(f's_mov_b32 s{sT2}, s{sXr}\ns_mov_b32 s{sT3}, s{sOr}')
    g(clr_x(' sc1'))
    g(kv_store(AV, AV, 0)); g(kv_store(AV, AV, KVS))
    g(f'''
    v_lshl_add_u32 v{t0}, v{half}, 4, v{r_}
    v_lshlrev_b32 v{t0}, 6, v{t0}
    v_lshl_add_u32 v{t0}, v{fh}, 5, v{t0}
    v_lshl_add_u32 v{vAW}, v{c_}, 3, v{t0}
    v_add_u32 v{vAQ}, {LQ}, v{vAW}
    ; wo
    v_lshl_add_u32 v{t0}, v{half}, 2, v{r_}
    v_lshlrev_b32 v{t0}, 6, v{t0}
    v_and_b32 v{t1}, 1, v{c_}
    v_lshl_add_u32 v{t0}, v{t1}, 5, v{t0}
    v_lshl_add_u32 v{t0}, v{fh}, 4, v{t0}
    v_lshrrev_b32 v{t1}, 1, v{c_}
    v_lshl_add_u32 v{t0}, v{t1}, 3, v{t0}
    v_add_u32 v{vAO}, {LO}, v{t0}
    s_lshl_b32 s{sT0}, s{sW}, 9
    s_add_u32 s{sT0}, s{sT0}, {SCR}
    v_lshl_add_u32 v{t0}, v{tok}, 4, s{sT0}
    v_mul_u32_u24 v{t1}, {RS}, v{half}
    v_add_u32 v{vPHIw}, v{t0}, v{t1}
    v_mul_u32_u24 v{t1}, {PS}, v{half}
    v_add_u32 v{vVw}, v{t0}, v{t1}
    v_add_u32 v{vVw}, {4*RS}, v{vVw}
    v_mul_u32_u24 v{t1}, {RS}, v{half}
    v_lshl_add_u32 v{t1}, v{tok}, 4, v{t1}
    v_add_u32 v{vKVFr}, {SCR}, v{t1}
    s_mul_i32 s{sT0}, s{sW}, {RS}
    s_add_u32 s{sT0}, s{sT0}, {SCR}
    s_lshr_b32 s{sT1}, s{sW}, 1
    s_mul_i32 s{sT1}, s{sT1}, {RS}
    s_add_u32 s{sT1}, s{sT1}, {SCR + 4*RS}
    v_lshrrev_b32 v{t0}, 1, v{c_}
    v_and_b32 v{t1}, 1, v{c_}
    v_mul_u32_u24 v{vPHIr}, {PS}, v{t0}
    v_lshl_add_u32 v{vPHIr}, v{t1}, 3, v{vPHIr}
    v_lshl_add_u32 v{vPHIr}, v{l2}, 4, v{vPHIr}
    v_add_u32 v{vPHIr}, s{sT0}, v{vPHIr}
    v_mul_u32_u24 v{vVr}, {PS}, v{t1}
    v_lshl_add_u32 v{vVr}, v{t0}, 3, v{vVr}
    v_lshl_add_u32 v{vVr}, v{l2}, 4, v{vVr}
    v_add_u32 v{vVr}, s{sT1}, v{vVr}
    v_lshlrev_b32 v{vZw}, 9, v{t0}
    v_lshl_add_u32 v{vZw}, v{t1}, 3, v{vZw}
    v_lshl_add_u32 v{vZw}, v{l2}, 4, v{vZw}
    v_add_u32 v{vZw}, s{sT0}, v{vZw}
    v_add_u32 v{vZw}, 256, v{vZw}
    v_bfe_u32 v{t0}, v0, 3, 1
    v_lshlrev_b32 v{vKVFw}, 9, v{fh}
    v_lshl_add_u32 v{vKVFw}, v{t0}, 3, v{vKVFw}
    v_and_b32 v{t0}, 7, v0
    v_lshl_add_u32 v{t0}, v{t0}, 1, v{half}
    v_lshl_add_u32 v{vKVFw}, v{t0}, 4, v{vKVFw}
    v_add_u32 v{vKVFw}, s{sT0}, v{vKVFw}
    v_lshlrev_b32 v{vZld}, 7, v{l2}
    v_lshl_add_u32 v{vZld}, v{c_}, 3, v{vZld}
    v_add_u32 v{vZld}, 8192, v{vZld}
    v_lshlrev_b32 v{vProbe}, 11, v{l2}
    v_lshl_add_u32 v{vProbe}, v{c_}, 4, v{vProbe}
    v_add_u32 v{vProbe}, {1024 + 960 + 12}, v{vProbe}
    s_lshl_b32 s{sT0}, s{sW}, 11
    s_add_u32 s{sT0}, s{sT0}, {SCR}
    v_lshl_add_u32 v{AB+2}, v{tok}, 6, s{sT0}
    v_lshl_add_u32 v{AB+2}, v{half}, 5, v{AB+2}
    ''')
    for i in (1, 2, 3): g(f'v_mov_b32 v{BX+i}, 0')
    for i in range(8): g(f'v_mov_b32 v{CS+i}, 0')
    waddr_setup(g)
    g(f'''
    s_lshl_b32 s{sT0}, s{sRG}, 17
    s_lshl_b32 s{sT1}, s{sW}, 15
    s_add_u32 s{sT0}, s{sT0}, s{sT1}
    s_add_u32 s{sT0}, s{sT0}, s{sT3}
    s_lshl_b32 s{sT1}, s{sW}, 11
    s_add_u32 m0, s{sT1}, {SCR}
    s_nop 0
    buffer_load_dwordx4 v{T+7}, {srd(sXI)}, s{sT0} offen lds
    s_add_u32 s{sT0}, s{sT0}, {16*1024}
    s_add_u32 m0, s{sT1}, {SCR + 1024}
    s_nop 0
    buffer_load_dwordx4 v{T+7}, {srd(sXI)}, s{sT0} offen lds
    ''')
    nE0 = 2
    for t in 'kv':
        for j in range(2): dma_piece(g, t, j); nE0 += 1
    g(f'''
    s_and_b32 s{sT1}, s{sW}, 1
    s_cmp_eq_u32 s{sT1}, 0
    s_cselect_b32 s4, s8, s16
    s_cselect_b32 s5, s9, s17
    s_mov_b32 s6, 16384
    s_mov_b32 s7, 0x20000
    s_lshl_b32 s{sT1}, s{sT1}, 10
    s_add_u32 m0, s{sT1}, {WPH}
    s_lshl_b32 s{sT0}, s{sHP}, 10
    buffer_load_dwordx4 v{vL16}, s[4:7], s{sT0} offen lds
    ''')
    nE0 += 1
    g(f'''
    s_waitcnt vmcnt({nE0})
    s_barrier
    s_lshl_b32 s{sT2}, s{sRG}, 4
    s_add_u32 s{sT1}, s{sT2}, s{sHP}
    s_or_b32 s{sXCC}, s{sXCC}, 0x80
    v_mov_b32 v{AB+4}, s{sXCC}
    v_mov_b32 v{AB+5}, 0
    s_cmp_lg_u32 s{sW}, 0
    s_cbranch_scc1 Lnoflag
    s_mov_b64 exec, 1
    buffer_store_byte v{AB+4}, v{AB+5}, {srd(sDBG)}, s{sT1} offen
    s_mov_b64 exec, -1
    Lnoflag:
    ''')
    g.stamp(61, False)
    for t in 'kv':
        for j in range(2, 8): dma_piece(g, t, j)
    for t in 'qo':
        for j in range(8): dma_piece(g, t, j)
    g(f'''
    s_lshl_b32 s{sT2}, s{sRG}, 4
    s_mul_i32 s{sT3}, s{sXCC}, 0x01010101
    s_mov_b32 s{sCnt}, 0
    Lfpoll:
    buffer_load_dwordx4 {v(AB+8,4)}, v{AB+5}, {srd(sDBG)}, s{sT2} offen sc1
    s_waitcnt vmcnt(0)
    v_and_b32 v{AB+6}, v{AB+8}, v{AB+9}
    v_and_b32 v{AB+7}, v{AB+10}, v{AB+11}
    v_and_b32 v{AB+6}, v{AB+6}, v{AB+7}
    v_and_b32 v{AB+6}, 0x80808080, v{AB+6}
    v_cmp_ne_u32 vcc, 0x80808080, v{AB+6}
    s_cbranch_vccnz Lfretry
    v_xor_b32 v{AB+8}, s{sT3}, v{AB+8}
    v_xor_b32 v{AB+9}, s{sT3}, v{AB+9}
    v_xor_b32 v{AB+10}, s{sT3}, v{AB+10}
    v_xor_b32 v{AB+11}, s{sT3}, v{AB+11}
    v_or_b32 v{AB+8}, v{AB+8}, v{AB+9}
    v_or_b32 v{AB+10}, v{AB+10}, v{AB+11}
    v_or_b32 v{AB+8}, v{AB+8}, v{AB+10}
    v_and_b32 v{AB+8}, 0x0f0f0f0f, v{AB+8}
    s_nop 0
    v_readfirstlane_b32 s{sMode}, v{AB+8}
    s_cmp_lg_u32 s{sW}, 0
    s_cbranch_scc1 Lnolead
    s_cmp_eq_u32 s{sHP}, 0
    s_cselect_b32 s{sT0}, 0x40, 0
    s_or_b32 s{sT1}, s{sT0}, s{sMode}
    s_cmp_eq_u32 s{sT1}, 0
    s_cbranch_scc1 Lnolead
    v_or_b32 v{AB+4}, s{sT0}, v{AB+4}
    s_add_u32 s{sT1}, s{sT2}, s{sHP}
    s_mov_b64 exec, 1
    buffer_store_byte v{AB+4}, v{AB+5}, {srd(sDBG)}, s{sT1} offen sc1
    s_mov_b64 exec, -1
    Lnolead:
    ''')
    g.ool(f'''
    Lfretry:
    s_sub_u32 s{sBud}, s{sBud}, 1
    s_cbranch_scc1 Lexit
    s_add_u32 s{sCnt}, s{sCnt}, 1
    s_and_b32 s{sT0}, s{sCnt}, 7
    s_cmp_lg_u32 s{sT0}, 0
    s_cbranch_scc1 Lfpoll
    s_cmp_lg_u32 s{sW}, 0
    s_cbranch_scc1 Lfretry2
    s_add_u32 s{sT1}, s{sT2}, s{sHP}
    s_mov_b64 exec, 1
    buffer_store_byte v{AB+4}, v{AB+5}, {srd(sDBG)}, s{sT1} offen sc1
    s_mov_b64 exec, -1
    s_waitcnt vmcnt(0)
    buffer_wbl2 sc1
    s_waitcnt vmcnt(0)
    buffer_inv sc1
    s_waitcnt vmcnt(0)
    Lfretry2:
    s_sleep 8
    s_branch Lfpoll
    ''')
    g.stamp(62, False)
    g(f'ds_read_b128 {v(T,4)}, v{AB+2}\nds_read_b128 {v(T+4,4)}, v{AB+2} offset:16\ns_waitcnt lgkmcnt(0)')
    for i in range(8):
        g(f'v_lshlrev_b32 v{AK+2*i}, 16, v{T+i}\nv_and_b32 v{AK+2*i+1}, 0xffff0000, v{T+i}')
    for t in 'kvq': cs_partial(g, t, 0, X)
    g.stamp(63, False)

    g('.p2align 6\nLepi:')
    for i in range(8): g(f'v_cvt_pk_bf16_f32 v{T+i}, v{AK+2*i}, v{AK+2*i+1}')
    g(f'''
    v_min_u32 v{T+3}, -2, v{T+3}
    v_min_u32 v{T+7}, -2, v{T+7}
    s_add_u32 s{sT0}, s{sXr}, s{sXwo}
    s_add_u32 s{sT1}, s{sXr}, s{sSwo}
    ''')
    g.modal(lambda fl: f'''
    buffer_store_dwordx4 {v(T,4)}, v{vL16}, {srd(sWS)}, s{sT0} offen{fl}
    buffer_store_dwordx4 {v(T+4,4)}, v{vL16}, {srd(sWS)}, s{sT0} offen offset:1024{fl}
    ''')
    S1, S2 = AV, AV + 2
    g(f'v_pk_add_f32 {v(S1,2)}, {v(AK,2)}, {v(AK+2,2)}')
    g(f'v_pk_mul_f32 {v(S2,2)}, {v(AK,2)}, {v(AK,2)}')
    g(f'v_pk_fma_f32 {v(S2,2)}, {v(AK+2,2)}, {v(AK+2,2)}, {v(S2,2)}')
    for i in range(4, 16, 2):
        g(f'v_pk_add_f32 {v(S1,2)}, {v(S1,2)}, {v(AK+i,2)}')
        g(f'v_pk_fma_f32 {v(S2,2)}, {v(AK+i,2)}, {v(AK+i,2)}, {v(S2,2)}')
    g(f'''
    v_add_f32 v{S1}, v{S1}, v{S1+1}
    v_add_f32 v{S2}, v{S2}, v{S2+1}
    s_nop 1
    v_permlane32_swap_b32 v{S1}, v{S2}
    v_add_f32 v{S1}, v{S1}, v{S2}
    v_min_u32 v{S1}, -2, v{S1}
    ''')
    g.modal(lambda fl: f'buffer_store_dword v{S1}, v{vL16}, {srd(sWS)}, s{sT1} offen{fl}')
    g.stamp(0)
    for i in range(9): g(f's_add_u32 s{sOff+i}, s{sXr}, {4096*i}')
    for i in range(16): g(f'v_mov_b32 v{XO+i}, v{AK+i}')
    g('s_waitcnt lgkmcnt(0)\ns_barrier')
    refill(g, 'q', 0, X); refill(g, 'o', 0, X + 48)
    g(f'''
    s_and_b32 s{sT0}, s{sL}, 1
    s_lshl_b32 s{sT0}, s{sT0}, 10
    s_add_u32 s{sT0}, s{sT0}, {WPH - (LO >> 1)}
    v_and_b32 v{T+1}, 0xffffffc0, v{vAO}
    v_lshrrev_b32 v{T+1}, 1, v{T+1}
    v_and_b32 v{T+2}, 24, v{vAO}
    v_add3_u32 v{T}, v{T+1}, v{T+2}, s{sT0}
    ''')
    for h in range(2):
        for b in range(2): g(trr(WP + 4*h + 2*b, T, h * 512 + b * 256))
    g(f'''
    v_bfe_u32 v{T+1}, v{vL16}, 6, 1
    v_mul_u32_u24 v{T+1}, 0x8000, v{T+1}
    v_lshl_add_u32 v{T+1}, v{T+1}, 16, v{T+1}
    ''')
    cs_read(g, 'kv', AV)
    for i in range(8): g(f'v_xor_b32 v{WP+i}, v{T+1}, v{WP+i}')
    g.stamp(1)
    g('Lx_redo:')
    PF = 3
    def a_reads(s):
        slot = AB + 8 * (s & 3)
        return [trr(slot, vAW, woff(s, 0)), trr(slot + 2, vAW, woff(s, 1)),
                trr(slot + 4, vAW, LV + woff(s, 0)), trr(slot + 6, vAW, LV + woff(s, 1))]
    for s in range(PF):
        for x in a_reads(s): g(x)
    ST = X + 112
    g('Lx_spin:')
    for i in range(4): g(fragld(32 + i, ST + 4 * i))
    for j in range(W): g(fragld(j))
    g(f's_waitcnt vmcnt({W})')
    g(f'v_max3_u32 v{T}, v{ST}, v{ST+1}, v{ST+2}')
    g(f'v_max3_u32 v{T+1}, v{ST+3}, v{ST+4}, v{ST+5}')
    for i in range(6, 14, 4):
        g(f'v_max3_u32 v{T}, v{ST+i}, v{ST+i+1}, v{T}')
        g(f'v_max3_u32 v{T+1}, v{ST+i+2}, v{ST+i+3}, v{T+1}')
    g(f'v_max3_u32 v{T}, v{ST+14}, v{ST+15}, v{T}')
    g(f'v_max_u32 v{T}, v{T}, v{T+1}')
    g(f'v_cmp_eq_u32 vcc, -1, v{T}\ns_cbranch_vccnz Lx_retry')
    g.retry('Lx_retry', 'Lx_spin')
    ex = []
    for i in range(8): ex.append(f'v_add_f32 v{ST+i}, v{ST+i}, v{ST+8+i}')
    for i in range(4): ex.append(f'v_add_f32 v{ST+i}, v{ST+i}, v{ST+4+i}')
    ex += [f'v_add_f32 v{ST}, v{ST}, v{ST+2}', f'v_add_f32 v{ST+1}, v{ST+1}, v{ST+3}', f'v_add_f32 v{T}, v{ST}, v{ST+1}',
           f'v_mul_f32 v{T}, 0x3b000000, v{T}', f'v_mov_b32 v{T+1}, v{T}', 's_nop 0', 's_nop 0',
           f'v_permlane32_swap_b32 v{T}, v{T+1}',
           f'v_fma_f32 v{T+1}, -v{T}, v{T}, v{T+1}', f'v_max_f32 v{T+1}, 0, v{T+1}', f'v_add_f32 v{T+1}, 0x3727c5ac, v{T+1}',
           f'v_rsq_f32 v{vRstd}, v{T+1}', f'v_cvt_pk_bf16_f32 v{T+2}, -v{T}, -v{T}',
           f'v_mul_f32 v{vC}, 0x3fb8aa3b, v{vRstd}', f'v_lshlrev_b32 v{T+3}, 16, v{T+2}',
           f'v_add_f32 v{T+3}, v{T}, v{T+3}', f'v_cvt_pk_bf16_f32 v{T+3}, -v{T+3}, -v{T+3}',
           f'v_cndmask_b32 v{BX}, v{T+2}, v{T+3}, s[{sHalf}:{sHalf+1}]']
    for s in range(32):
        slot = AB + 8 * (s & 3)
        nv = min(W - 1, 31 - s); nl = 4 * min(PF - 1, 31 - s)
        g(f's_waitcnt vmcnt({nv}) lgkmcnt({nl})')
        rd = a_reads(s + PF) if s + PF < 32 else []
        g(mfma32(AK, slot, X + 4*s, '0' if s == 0 else None))
        for x in rd[:2]: g(x)
        if s + W < 32: g(fragld(s + W))
        for x in ex[4*s:4*s+2]: g(x)
        g(mfma32(AV, slot + 4, X + 4*s, '0' if s == 0 else None))
        for x in rd[2:]: g(x)
        for x in ex[4*s+2:4*s+4]: g(x)
        if s == 1: g(f'v_max_u32 v{vChk}, v{X+3}, v{X+7}')
        elif s & 1: g(f'v_max3_u32 v{vChk}, v{X+4*s-1}, v{X+4*s+3}, v{vChk}')
        if s == 10:
            g(mfma32(AK, CS, BX)); g(mfma32(AV, CS + 2, BX))
    g(f'v_cmp_eq_u32 vcc, -1, v{vChk}\ns_cbranch_vccnz Lx_bad')
    g.retry('Lx_bad', 'Lx_redo')
    g.stamp(2)
    g(f's_cmp_eq_u32 s{sL}, 0\ns_cbranch_scc1 Lcold0\nLcold0_back:')
    save = g.L; g.L = g.tail
    g('Lcold0:')
    waddr_setup(g)
    for j0 in (0, 2):
        for t in 'kvqo':
            for j in (range(2) if j0 == 0 else range(2, 8)): stash_load_piece(g, t, j)
    g('s_branch Lcold0_back')
    g.L = save
    g('s_nop 7')
    for i in range(8): g(f'v_cvt_pk_bf16_f32 v{T+i}, v{AK+2*i}, v{AK+2*i+1}')
    g(mfma32(AB, WP, T, '0'))
    g(f'v_mul_f32 v{AV}, v{AV}, v{vRstd}')
    g(mfma32(AB + 16, WP + 4, T + 4, '0'))
    for i in range(1, 16): g(f'v_mul_f32 v{AV+i}, v{AV+i}, v{vRstd}')
    for i in range(8): g(f'v_cvt_pk_bf16_f32 v{AV+i}, v{AV+2*i}, v{AV+2*i+1}')
    g(f'ds_write_b128 v{vVw}, {v(AV,4)}\nds_write_b128 v{vVw}, {v(AV+4,4)} offset:{RS}')
    ONES = AV + 8
    for i in range(4): g(f'v_mov_b32 v{ONES+i}, s{sOnes}')
    softmax2(g, AB, AK, [f'ds_write_b128 v{vPHIw}, {v(AK+8*h,4)} offset:{2*h*RS}\nds_write_b128 v{vPHIw}, {v(AK+8*h+4,4)} offset:{2*h*RS+PS}' for h in range(2)])
    g('s_waitcnt lgkmcnt(0)\ns_barrier')
    g.stamp(3)
    for tb in range(4):
        for rd in range(2): g(trr(AB + 8*tb + 2*rd, vPHIr, tb * 512 + rd * 256))
        for rd in range(2): g(trr(AB + 8*tb + 4 + 2*rd, vVr, tb * 512 + rd * 256))
        if tb == 2: g('s_waitcnt lgkmcnt(8)'); g(mfma16(AK, AB, AB + 4, '0')); g(mfma16(AK + 4, AB, ONES, '0'))
    for tb in range(1, 4):
        g(f's_waitcnt lgkmcnt({4 * (3 - tb)})')
        g(mfma16(AK, AB + 8*tb, AB + 8*tb + 4)); g(mfma16(AK + 4, AB + 8*tb, ONES))
    g('s_nop 6')
    g(f'''
    v_cvt_pk_bf16_f32 v{T+4}, v{AK}, v{AK+1}
    v_cvt_pk_bf16_f32 v{T+5}, v{AK+2}, v{AK+3}
    v_cvt_pk_bf16_f32 v{T+6}, v{AK+4}, v{AK+5}
    v_cvt_pk_bf16_f32 v{T+7}, v{AK+6}, v{AK+7}
    v_min_u32 v{T+4}, -2, v{T+4}
    v_min_u32 v{T+6}, -2, v{T+6}
    ''')
    g(kv_store(T + 4, T + 6, 0))
    g.stamp(4)
    for i in range(4): g(f'v_mov_b32 v{AV+i}, -1')
    g(f'''
    s_xor_b32 s{sXr}, s{sXr}, {XBS}
    s_mov_b32 s{sT2}, s{sXr}
    s_xor_b32 s{sT3}, s{sOr}, {OBS}
    ''')
    g.modal(clr_x)
    g(kv_store(AV, AV, 2 * KVS))
    cs_read(g, 'q', AK)
    def q_reads(s):
        slot = AB + 4 * (s & 7)
        return [trr(slot, vAQ, woff(s, 0)), trr(slot + 2, vAQ, woff(s, 1))]
    PQ = 5
    for s in range(PQ):
        for x in q_reads(s): g(x)
    g(mfma32(AV, CS + 4, BX, '0'))
    KVL = X; ZL = X + 32; KA = X + 34
    def kv_loads():
        o = []
        for i in range(8):
            o.append(f'buffer_load_dwordx4 {v(KVL+4*i,4)}, v{vL16}, {srd(sWS)}, s{sKVr if i < 4 else sT0} offen offset:{(i&3)*1024} sc1')
        o.append(f'buffer_load_dwordx2 {v(ZL,2)}, v{vZld}, {srd(sWS)}, s{sKVr} offen sc1')
        return o
    for s in range(32):
        g(f's_waitcnt lgkmcnt({2 * min(PQ - 1, 31 - s)})')
        g(mfma32(AV, AB + 4 * (s & 7), X + 4*s))
        if s + PQ < 32:
            for x in q_reads(s + PQ): g(x)
    g(f's_cmp_eq_u32 s{sL}, 0\ns_cbranch_scc1 Lgchk\nLgchk_back:')
    g.ool(f'''
    Lgchk:
    v_and_b32 v{T}, 0xf0, v{vL16}
    Lgchk2:
    buffer_load_ubyte v{T+1}, v{T}, {srd(sDBG)}, 0 offen sc1
    s_waitcnt vmcnt(0)
    v_and_b32 v{T+1}, 0x40, v{T+1}
    v_cmp_eq_u32 vcc, 0, v{T+1}
    s_cbranch_vccz Lgchk_back
    s_sub_u32 s{sBud}, s{sBud}, 1
    s_cbranch_scc1 Lexit
    s_and_b32 s{sT0}, s{sBud}, 15
    s_cmp_lg_u32 s{sT0}, 0
    s_cbranch_scc1 Lgchk2
    buffer_wbl2 sc1
    s_waitcnt vmcnt(0)
    buffer_inv sc1
    s_waitcnt vmcnt(0)
    s_branch Lgchk2
    ''')
    g(f's_add_u32 s{sT0}, s{sKVr}, 4096\ns_waitcnt vmcnt(7)')
    for x in kv_loads(): g(x)
    g.stamp(5)
    g('s_nop 1')
    for i in range(8): g(f'v_cvt_pk_bf16_f32 v{T+i}, v{AV+2*i}, v{AV+2*i+1}')
    g(mfma32(AB, WP, T, '0')); g('s_nop 0'); g(mfma32(AB + 16, WP + 4, T + 4, '0'))
    g('s_nop 10')
    softmax2(g, AB, AK)
    refill(g, 'k', 1, X + 64)
    g.stamp(6)
    g('Lkv_wait:')
    for i in range(8):
        g(f's_waitcnt vmcnt({8 - i})')
        for d in range(4):
            for hl in range(2):
                acc = KA + 2 * d + hl
                g(f'v_dot2_f32_bf16 v{acc}, v{KVL+4*i+d}, s{sSel0+hl}, {"0" if i == 0 else "v%d" % acc}')
        if i == 0: g(f'v_max_u32 v{vChk}, v{KVL}, v{KVL+2}')
        else: g(f'v_max3_u32 v{vChk}, v{KVL+4*i}, v{KVL+4*i+2}, v{vChk}')
    g(f'''
    s_waitcnt vmcnt(0)
    v_max_u32 v{vChk}, v{vChk}, v{ZL}
    v_cmp_eq_u32 vcc, -1, v{vChk}
    s_cbranch_vccnz Lkv_retry
    ds_write_b64 v{vZw}, {v(ZL,2)}
    ''')
    g.ool(f'Lkv_retry:\ns_sub_u32 s{sBud}, s{sBud}, 1\ns_cbranch_scc1 Lexit\ns_add_u32 s{sT0}, s{sKVr}, 4096')
    g.ool('\n'.join(kv_loads())); g.ool('s_branch Lkv_wait')
    for i in range(4): g(f'v_permlane32_swap_b32 v{KA+i}, v{KA+4+i}')
    g(f'''
    v_pk_add_f32 {v(KA,2)}, {v(KA,2)}, {v(KA+4,2)}
    v_pk_add_f32 {v(KA+2,2)}, {v(KA+2,2)}, {v(KA+6,2)}
    v_cvt_pk_bf16_f32 v{KA}, v{KA}, v{KA+1}
    v_cvt_pk_bf16_f32 v{KA+1}, v{KA+2}, v{KA+3}
    ds_write_b64 v{vKVFw}, {v(KA,2)}
    s_waitcnt lgkmcnt(0)
    s_barrier
    ''')
    g.stamp(7)
    KF = X + 48
    for h in range(2):
        for s in range(2): g(f'ds_read_b128 {v(KF+8*h+4*s,4)}, v{vKVFr} offset:{2*h*RS + 512*s}')
    g(f's_add_u32 s{sT0}, s{sOr}, s{sXwo}')
    for h in range(2):
        for s in range(2):
            g(f's_waitcnt lgkmcnt({3 - 2*h - s})')
            g(mfma32(AB + 16*h, KF + 8*h + 4*s, AK + 8*h + 4*s, '0' if s == 0 else None))
    g('s_nop 7')
    for h in range(2):
        D = AB + 16 * h
        if h == 1: g('s_nop 0')
        g(f'''
        v_pk_add_f32 {v(D+8,2)}, {v(D+8,2)}, {v(D+10,2)}
        v_pk_add_f32 {v(D+12,2)}, {v(D+12,2)}, {v(D+14,2)}
        v_pk_add_f32 {v(D+8,2)}, {v(D+8,2)}, {v(D+12,2)}
        v_add_f32 v{D+8}, v{D+8}, v{D+9}
        v_mov_b32 v{D+9}, v{D+8}
        s_nop 1
        v_permlane32_swap_b32 v{D+8}, v{D+9}
        v_add_f32 v{D+8}, v{D+8}, v{D+9}
        v_add_f32 v{D+8}, 0x358637bd, v{D+8}
        v_rcp_f32 v{D+8}, v{D+8}
        s_nop 0
        ''')
        for i in range(0, 8, 2): g(f'v_pk_mul_f32 {v(D+i,2)}, {v(D+i,2)}, {v(D+8,2)} op_sel_hi:[1,0]')
        for i in range(4): g(f'v_cvt_pk_bf16_f32 v{T+4*h+i}, v{D+2*i}, v{D+2*i+1}')
        g(f'v_min_u32 v{T+4*h+3}, -2, v{T+4*h+3}')
        g.modal(lambda fl: f'buffer_store_dwordx4 {v(T+4*h,4)}, v{vL16}, {srd(sWS)}, s{sT0} offen offset:{1024*h}{fl}')
    g.stamp(8)
    for i in range(8): g(f's_add_u32 s{sOff+i}, s{sOr}, {4096*i}')
    refill(g, 'v', 1, X + 64)
    g('s_waitcnt lgkmcnt(0)')
    g.stamp(9)
    g('Lo_redo:')
    def o_reads(s):
        slot = AB + 4 * (s & 7)
        return [trr(slot, vAO, (16*s) * 64), trr(slot + 2, vAO, (16*s + 8) * 64)]
    for s in range(PQ):
        for x in o_reads(s): g(x)
    g('Lo_spin:')
    g(f'buffer_load_dword v{vChk}, v{vProbe}, {srd(sWS)}, s{sOr} offen sc1')
    for j in range(W): g(fragld(j))
    g(f's_waitcnt vmcnt({W})\nv_cmp_eq_u32 vcc, -1, v{vChk}\ns_cbranch_vccnz Lo_retry')
    g.retry('Lo_retry', 'Lo_spin')
    for s in range(32):
        g(f's_waitcnt vmcnt({min(W - 1, 31 - s)}) lgkmcnt({2 * min(PQ - 1, 31 - s)})')
        g(mfma32(AK, AB + 4 * (s & 7), X + 4*s, v(XO, 16) if s == 0 else None))
        if s + W < 32: g(fragld(s + W))
        if s + PQ < 32:
            for x in o_reads(s + PQ): g(x)
        if s & 1: g(f'v_max3_u32 v{vChk}, v{X+4*s-1}, v{X+4*s+3}, v{vChk}')
    g(f'v_cmp_eq_u32 vcc, -1, v{vChk}\ns_cbranch_vccnz Lo_bad')
    g.retry('Lo_bad', 'Lo_redo')
    g.stamp(10)
    g(f'''
    s_xor_b32 s{sOr}, s{sOr}, {OBS}
    s_add_u32 s{sKVr}, s{sKVr}, {KVS}
    s_add_u32 s{sL}, s{sL}, 1
    s_nop 4
    s_cmp_lg_u32 s{sL}, 4
    s_cbranch_scc1 Lepi
    ''')
    for i in range(8): g(f'v_cvt_pk_bf16_f32 v{T+i}, v{AK+2*i}, v{AK+2*i+1}')
    g(f'''
    v_and_b32 v{AV}, 31, v0
    v_lshrrev_b32 v{AV+1}, 5, v0
    v_lshlrev_b32 v{AV}, 10, v{AV}
    v_lshl_add_u32 v{AV}, v{AV+1}, 5, v{AV}
    s_lshl_b32 s{sT0}, s{sRG}, 17
    s_lshl_b32 s{sT1}, s{sW}, 15
    s_add_u32 s{sT0}, s{sT0}, s{sT1}
    s_lshl_b32 s{sT1}, s{sHP}, 6
    s_add_u32 s{sT0}, s{sT0}, s{sT1}
    buffer_store_dwordx4 {v(T,4)}, v{AV}, {srd(sOUT)}, s{sT0} offen
    buffer_store_dwordx4 {v(T+4,4)}, v{AV}, {srd(sOUT)}, s{sT0} offen offset:16
    Lexit:
    ''')
    if stamps:
        g(f'''
        s_waitcnt vmcnt(0)
        s_memtime s[{sTm}:{sTm+1}]
        s_waitcnt lgkmcnt(0)
        v_writelane_b32 v{vStamp}, s{sTm}, 59
        v_writelane_b32 v{vStamp}, s{sBud}, 15
        v_writelane_b32 v{vStamp}, s{sMode}, 31
        s_memrealtime s[{sTm}:{sTm+1}]
        s_waitcnt lgkmcnt(0)
        v_writelane_b32 v{vStamp}, s{sTm}, 47
        s_lshl_b32 s{sT0}, s2, 2
        s_add_u32 s{sT0}, s{sT0}, s{sW}
        s_lshl_b32 s{sT0}, s{sT0}, 8
        s_add_u32 s{sT0}, s{sT0}, {STAMP}
        v_lshlrev_b32 v{T}, 2, v0
        buffer_store_dword v{vStamp}, v{T}, {srd(sWS)}, s{sT0} offen
        ''')
    g('Lexit2:\ns_endpgm')
    g.L += g.tail
    g(f'''.section .rodata,"a"
.p2align 6
.amdhsa_kernel {NAME}_kernel
.amdhsa_next_free_vgpr 512
.amdhsa_next_free_sgpr 102
.amdhsa_accum_offset 256
.amdhsa_group_segment_fixed_size 0
.amdhsa_kernarg_size 88
.amdhsa_user_sgpr_count 2
.amdhsa_user_sgpr_kernarg_segment_ptr 1
.amdhsa_system_sgpr_workgroup_id_x 1
.end_amdhsa_kernel''')
    return g.L

if __name__ == '__main__':
    import argparse
    ap = argparse.ArgumentParser()
    ap.add_argument('-o', default=None); ap.add_argument('--stamps', action='store_true'); ap.add_argument('-W', type=int, default=8)
    a = ap.parse_args()
    L = build(a.stamps, a.W)
    bad = hazard.check(L)
    for b in bad: print('HAZARD', b)
    out = a.o or os.path.join(os.path.dirname(__file__), '..', 'cdna_kernels', NAME + '.s')
    open(out, 'w').write('\n'.join(L) + '\n')
    print('wrote', out, len(L), 'lines', len(bad), 'hazards')
```

```python
import sys, os
sys.path.insert(0, os.path.dirname(__file__))
import hazard

NAME = 'interleave_layers__linear_kernel_hedgehog__linear_kernel_hedgehog__prompt'

XB = 0;          XBS = 0x400000; XBLK = 36864
OB = 0x800000;   OBS = 0x200000; OBLK = 32768
KVB = 0xC00000;  KVS = 0xA0000;  KVBLK = 10240
STAMP = 0x1000000
WS_BYTES = 0x1100000
LK, LV, LQ, LO = 0, 32768, 65536, 98304
SCR = 131072; PS = 2176; RS = 4352
WPH = SCR + 6 * RS; CSP = WPH + 2048
LDS_BYTES = 163840
vL16, vAW, vAQ, vAO, vPHIw, vVw, vPHIr, vVr, vKVFw, vZw, vKVFr, vZld, vL8, vZst, vProbe = range(1, 16)
vC, vRstd, vChk, vStamp = 16, 17, 18, 19
BX = 20; CS = 24; WP = 32; XO = 40; AK = 56; AV = 72; AB = 88; T = 120; X = 128
sWS, sDBG, sOUT, sXI, sWA, sWB, sOA, sOB = 28, 32, 36, 40, 44, 48, 52, 56
sW, sRG, sHP, sL, sMode, sBud, sXCC = 60, 61, 62, 63, 64, 65, 66
sRow = 68
sOff = 72
sXr, sOr, sKVr = 81, 82, 83
sHalf = 84
sT0, sT1, sT2, sT3 = 86, 87, 88, 89
sSel0, sSel1, sOnes = 90, 91, 92
sXwo, sSwo = 93, 94
sTm = 96
sCnt = 98

class G:
    def __init__(s, stamps=False, W=8):
        s.L = []; s.tail = []; s.stamps = stamps; s.W = W; s.nst = 0; s.uid = 0
    def __call__(s, t):
        for x in t.strip('\n').split('\n'):
            x = x.strip()
            if x: s.L.append(x if x.endswith(':') or x.startswith('.') else '    ' + x)
    def ool(s, t):
        for x in t.strip('\n').split('\n'):
            x = x.strip()
            if x: s.tail.append(x if x.endswith(':') or x.startswith('.') else '    ' + x)
    def label(s, p):
        s.uid += 1; return f'L{p}_{s.uid}'
    def stamp(s, idx, perlayer=True):
        if not s.stamps: return
        s(f's_memtime s[{sTm}:{sTm+1}]\ns_waitcnt lgkmcnt(0)')
        if perlayer:
            s(f's_lshl_b32 m0, s{sL}, 4\ns_add_u32 m0, m0, {idx}\ns_nop 0\nv_writelane_b32 v{vStamp}, s{sTm}, m0')
        else:
            s(f'v_writelane_b32 v{vStamp}, s{sTm}, {idx}')
    def modal(s, fn):
        a = s.label('slow'); b = s.label('back')
        s(f's_cmp_lg_u32 s{sMode}, 0\ns_cbranch_scc1 {a}')
        s(fn(''))
        s(f'{b}:')
        s.ool(f'{a}:'); s.ool(fn(' sc1')); s.ool(f's_branch {b}')
    def retry(s, lab, target):
        s.ool(f'{lab}:\ns_sub_u32 s{sBud}, s{sBud}, 1\ns_cbranch_scc1 Lexit\ns_branch {target}')

def v(a, n=1): return f'v{a}' if n == 1 else f'v[{a}:{a+n-1}]'
def a_(a, n=1): return f'a{a}' if n == 1 else f'a[{a}:{a+n-1}]'
def srd(s): return f's[{s}:{s+3}]'
def mfma32(d, a, b, c=None):
    c = v(d, 16) if c is None else c
    return f'v_mfma_f32_32x32x16_bf16 {v(d,16)}, {v(a,4)}, {v(b,4)}, {c}'
def mfma16(d, a, b, c=None):
    c = v(d, 4) if c is None else c
    return f'v_mfma_f32_16x16x32_bf16 {v(d,4)}, {v(a,4)}, {v(b,4)}, {c}'
def trr(d, addr, off): return f'ds_read_b64_tr_b16 {v(d,2)}, v{addr} offset:{off}'
def woff(s, b): return (32 * (s >> 1) + 8 * (s & 1) + 4 * b) * 64
def fragld(j, reg=None):
    reg = X + 4 * j if reg is None else reg
    return f'buffer_load_dwordx4 {v(reg,4)}, v{vL16}, {srd(sWS)}, s{sOff + (j >> 2)} offen offset:{(j & 3) * 1024} sc1'

TILE_LDS = {'k': LK, 'v': LV, 'q': LQ, 'o': LO}
TILE_COL = {'q': 0, 'k': 1024, 'v': 2048}
TILE_IDX = {'k': 0, 'v': 1, 'q': 2, 'o': 3}

def piece_goff(g, t, j):
    if t == 'o':
        g(f's_lshl_b32 s{sT0}, s{sRow + (j >> 1)}, 10')
        g(f's_add_u32 s{sT0}, s{sT0}, s{sT3}')
        if j & 1: g(f's_add_u32 s{sT0}, s{sT0}, {16 * 1024}')
    else:
        g(f's_mul_i32 s{sT0}, s{sRow + (j >> 1)}, 3072')
        g(f's_add_u32 s{sT0}, s{sT0}, s{sT3}')
        g(f's_add_u32 s{sT0}, s{sT0}, {TILE_COL[t] + (j & 1) * 16 * 3072}')

def waddr_setup(g):
    g(f'''
    v_lshrrev_b32 v{T+6}, 6, v{vL16}
    v_and_b32 v{T+5}, 48, v{vL16}
    v_lshl_add_u32 v{T+7}, v{T+6}, 10, v{T+5}
    v_mul_u32_u24 v{T+6}, 3072, v{T+6}
    v_add_u32 v{T+6}, v{T+6}, v{T+5}
    s_lshl_b32 s{sT3}, s{sHP}, 6
    ''')

def dma_piece(g, t, j):
    piece_goff(g, t, j)
    g(f's_lshl_b32 s{sT1}, s{sRow + (j >> 1)}, 6')
    g(f's_add_u32 m0, s{sT1}, {TILE_LDS[t] + (j & 1) * 1024}')
    g(f's_nop 0')
    g(f'buffer_load_dwordx4 v{T+7 if t == "o" else T+6}, {srd(sOA if t == "o" else sWA)}, s{sT0} offen lds')

def stash_load_piece(g, t, j):
    piece_goff(g, t, j)
    r = 128 + 32 * TILE_IDX[t] + 4 * j
    g(f'buffer_load_dwordx4 {a_(r,4)}, v{T+7 if t == "o" else T+6}, {srd(sOB if t == "o" else sWB)}, s{sT0} offen')

def piece_lds_addrs(g, t, base, R):
    for i in range(4):
        g(f's_lshl_b32 s{sT0}, s{sRow + i}, 6')
        g(f's_add_u32 s{sT0}, s{sT0}, {TILE_LDS[t]}')
        g(f'v_add_u32 v{R + i}, s{sT0}, v{base}')

def cs_partial(g, t, typ, R):
    g(f'''
    v_and_b32 v{R+4}, 0x3ff, v{vAW}
    v_lshrrev_b32 v{R+5}, 2, v{vAW}
    v_and_b32 v{R+5}, 0x100, v{R+5}
    v_add_u32 v{R+4}, v{R+4}, v{R+5}
    ''')
    piece_lds_addrs(g, t, R + 4, R)
    D = R + 8
    for j in range(8):
        for b in range(2):
            g(trr(D + 4 * j + 2 * b, R + (j >> 1), (j & 1) * 1024 + b * 512))
        if j == 3: g('s_waitcnt lgkmcnt(0)')
    g(f'v_mov_b32 v{R+4}, 0\nv_mov_b32 v{R+5}, 0')
    g('s_waitcnt lgkmcnt(0)')
    for i in range(32):
        g(f'v_dot2_f32_bf16 v{R+4+(i&1)}, v{D+i}, s{sOnes}, v{R+4+(i&1)}')
    g(f'''
    v_and_b32 v{R+6}, 0x1f0, v{vL16}
    s_lshl_b32 s{sT0}, s{sW}, 2
    s_add_u32 s{sT0}, s{sT0}, {CSP + (typ * 3 + TILE_IDX[t]) * 512}
    v_add_u32 v{R+6}, s{sT0}, v{R+6}
    v_add_f32 v{R+4}, v{R+4}, v{R+5}
    v_mov_b32 v{R+5}, v{R+4}
    s_nop 1
    v_permlane32_swap_b32 v{R+4}, v{R+5}
    v_add_f32 v{R+4}, v{R+4}, v{R+5}
    ds_write_b32 v{R+6}, v{R+4}
    ''')

def cs_read(g, tiles, R):
    g(f'''
    s_and_b32 s{sT0}, s{sL}, 1
    s_mul_i32 s{sT0}, s{sT0}, 1536
    s_add_u32 s{sT0}, s{sT0}, {CSP}
    v_and_b32 v{R}, 0x1f0, v{vL16}
    v_add_u32 v{R}, s{sT0}, v{R}
    ''')
    for i, t in enumerate(tiles):
        g(f'ds_read_b128 {v(R+4+4*i,4)}, v{R} offset:{TILE_IDX[t]*512}')
    g('s_waitcnt lgkmcnt(0)')
    for i, t in enumerate(tiles):
        b = R + 4 + 4 * i
        g(f'''
        v_add_f32 v{b}, v{b}, v{b+1}
        v_add_f32 v{b+2}, v{b+2}, v{b+3}
        v_add_f32 v{b}, v{b}, v{b+2}
        v_cvt_pk_bf16_f32 v{b+1}, v{b}, v{b}
        v_lshlrev_b32 v{b+1}, 16, v{b+1}
        v_sub_f32 v{b+1}, v{b}, v{b+1}
        v_cvt_pk_bf16_f32 v{CS + 2*TILE_IDX[t]}, v{b}, v{b+1}
        ''')

def refill(g, t, lfor, R):
    l1, l2, l3, done = g.label('rf1'), g.label('rf2'), g.label('rf3'), g.label('rfd')
    sa = 32 * TILE_IDX[t]; sb = 128 + sa
    g(f's_cmp_eq_u32 s{sL}, {(4 - lfor) if lfor else 0}\ns_cbranch_scc1 {done}')
    piece_lds_addrs(g, t, vL16, R)
    g(f's_cmp_eq_u32 s{sL}, {1 - lfor}\ns_cbranch_scc1 {l1}')
    g(f's_cmp_eq_u32 s{sL}, {2 - lfor}\ns_cbranch_scc1 {l2}')
    wr = lambda base: '\n'.join(f'ds_write_b128 v{R + (j >> 1)}, {a_(base + 4*j, 4)} offset:{(j & 1) * 1024}' for j in range(8))
    g(wr(sb))
    g(f'{done}:')
    g.ool(f'{l2}:'); g.ool(wr(sa)); g.ool(f's_branch {done}')
    save = g.L; g.L = g.tail
    g(f'{l1}:')
    for j in range(8): g(f'ds_read_b128 {a_(sa + 4*j, 4)}, v{R + (j >> 1)} offset:{(j & 1) * 1024}')
    g('s_waitcnt lgkmcnt(0)')
    g(wr(sb))
    if t != 'o':
        g('s_waitcnt lgkmcnt(0)')
        cs_partial(g, t, 1, R)
    g(f's_branch {done}')
    g.L = save

def softmax2(g, P, D, after=None):
    H = [P, P + 16]; M = [T, T + 2]; S = [T + 4, T + 6]
    for h in range(2):
        p = H[h]; m = M[h]
        g(f'v_max3_f32 v{m}, v{p}, v{p+1}, v{p+2}')
        g(f'v_max3_f32 v{m+1}, v{p+3}, v{p+4}, v{p+5}')
        for i in range(6, 14, 4):
            g(f'v_max3_f32 v{m}, v{p+i}, v{p+i+1}, v{m}')
            g(f'v_max3_f32 v{m+1}, v{p+i+2}, v{p+i+3}, v{m+1}')
        g(f'v_max3_f32 v{m}, v{p+14}, v{p+15}, v{m}')
        g(f'v_max_f32 v{m}, v{m}, v{m+1}')
        g(f'v_mul_f32 v{m}, v{m}, v{vC}')
        for i in range(0, 16, 2):
            g(f'v_pk_fma_f32 {v(p+i,2)}, {v(p+i,2)}, {v(vC,2)}, {v(m,2)} op_sel_hi:[1,0,0] neg_lo:[0,0,1] neg_hi:[0,0,1]')
        for i in range(16): g(f'v_exp_f32 v{p+i}, v{p+i}')
        s_ = S[h]
        g(f'v_pk_add_f32 {v(s_,2)}, {v(p,2)}, {v(p+2,2)}')
        for i in range(4, 16, 2): g(f'v_pk_add_f32 {v(s_,2)}, {v(s_,2)}, {v(p+i,2)}')
        g(f'v_add_f32 v{s_}, v{s_}, v{s_+1}')
        g(f'v_rcp_f32 v{s_}, v{s_}')
        g('s_nop 0')
        for i in range(0, 16, 2):
            g(f'v_pk_mul_f32 {v(p+i,2)}, {v(p+i,2)}, {v(s_,2)} op_sel_hi:[1,0]')
        for i in range(8): g(f'v_cvt_pk_bf16_f32 v{D+8*h+i}, v{p+2*i}, v{p+2*i+1}')
        if after: g(after[h])

def build(stamps=False, W=8, opt=''):
    g = G(stamps, W)
    hdr = open(os.path.join(os.path.dirname(__file__), '..', 'cdna_kernels', NAME + '.s.ref')).read().split('\n')
    for ln in hdr:
        if ln.startswith('; @launch'): g.L.append(f'; @launch grid=(256,1,1) block=(256,1,1) lds={LDS_BYTES}'); break
        g.L.append(ln)
    g(f'''.amdgcn_target "amdgcn-amd-amdhsa--gfx950"
.text
.globl {NAME}_kernel
.p2align 8
.type {NAME}_kernel,@function
{NAME}_kernel:''')
    if stamps: g('s_memrealtime s[100:101]')
    g(f'''
    s_cmp_ge_u32 s2, 256
    s_cbranch_scc1 Lexit2
    s_load_dwordx16 s[4:19], s[0:1], 0
    s_load_dwordx4 s[20:23], s[0:1], 64
    s_load_dwordx2 s[24:25], s[0:1], 80
    ''')
    if 'c' in opt:
        g(f'''
        s_getpc_b64 s[26:27]
        v_lshlrev_b32 v{T+6}, 7, v0
        v_min_u32 v{T+6}, Lend-Lpc-128, v{T+6}
        global_load_dword v{T+7}, v{T+6}, s[26:27]
        '''.replace('s_getpc_b64 s[26:27]', 's_getpc_b64 s[26:27]\nLpc:'))
    g(f'''
    v_lshrrev_b32 v{T}, 6, v0
    v_and_b32 v0, 63, v0
    v_readfirstlane_b32 s{sW}, v{T}
    s_getreg_b32 s{sXCC}, hwreg(HW_REG_XCC_ID, 0, 4)
    s_and_b32 s{sRG}, s2, 7
    s_lshl_b32 s{sRG}, s{sRG}, 1
    s_lshr_b32 s{sT0}, s2, 7
    s_add_u32 s{sRG}, s{sRG}, s{sT0}
    s_lshr_b32 s{sHP}, s2, 3
    s_and_b32 s{sHP}, s{sHP}, 15
    s_mov_b32 s{sL}, 0
    s_mov_b32 s{sBud}, 0x80000
    s_mov_b32 s{sHalf}, 0
    s_mov_b32 s{sHalf+1}, -1
    s_mov_b32 s{sSel0}, 0x3f80
    s_mov_b32 s{sSel1}, 0x3f800000
    s_mov_b32 s{sOnes}, 0x3f803f80
    v_mov_b32 v{vStamp}, 0
    ''')
    g(f'''
    s_and_b32 s{sT0}, s{sHP}, 1
    s_and_b32 s{sT1}, s{sRG}, 1
    s_lshl_b32 s{sT1}, s{sT1}, 1
    s_add_u32 s{sT0}, s{sT0}, s{sT1}
    s_lshl_b32 s{sT2}, s{sW}, 5
    ''')
    for i in range(4):
        g(f'''
        s_add_u32 s{sT1}, s{sT0}, {i}
        s_and_b32 s{sT1}, s{sT1}, 3
        s_lshl_b32 s{sT1}, s{sT1}, 7
        s_add_u32 s{sRow+i}, s{sT1}, s{sT2}
        ''')
    g(f'''
    s_lshl_b32 s{sT0}, s{sRG}, 2
    s_add_u32 s{sT0}, s{sT0}, s{sW}
    s_mul_i32 s{sXr}, s{sT0}, {XBLK}
    s_lshl_b32 s{sOr}, s{sT0}, 15
    s_add_u32 s{sOr}, s{sOr}, {OB}
    s_lshl_b32 s{sT0}, s{sHP}, 2
    s_add_u32 s{sT0}, s{sT0}, s{sW}
    s_mul_i32 s{sKVr}, s{sT0}, {KVBLK}
    s_add_u32 s{sKVr}, s{sKVr}, {KVB}
    s_lshl_b32 s{sXwo}, s{sHP}, 11
    s_lshr_b32 s{sT0}, s{sHP}, 2
    s_lshl_b32 s{sT0}, s{sT0}, 10
    s_and_b32 s{sT1}, s{sHP}, 3
    s_lshl_b32 s{sT1}, s{sT1}, 2
    s_add_u32 s{sSwo}, s{sT0}, s{sT1}
    s_add_u32 s{sSwo}, s{sSwo}, 32768
    ''')
    tok, half, fh, r_, c_, l2 = T, T+1, T+2, T+3, T+4, T+5
    t0, t1 = AB, AB + 1
    g(f'''
    v_lshlrev_b32 v{vL16}, 4, v0
    v_lshlrev_b32 v{vL8}, 3, v0
    v_and_b32 v{tok}, 31, v0
    v_lshrrev_b32 v{half}, 5, v0
    v_bfe_u32 v{fh}, v0, 4, 1
    v_bfe_u32 v{r_}, v0, 2, 2
    v_and_b32 v{c_}, 3, v0
    v_lshrrev_b32 v{l2}, 2, v0
    v_and_b32 v{t0}, 15, v0
    v_lshrrev_b32 v{t1}, 4, v0
    v_lshlrev_b32 v{t1}, 3, v{t1}
    v_lshl_add_u32 v{vZst}, v{t0}, 5, v{t1}
    v_cmp_lt_u32 vcc, 3, v{t0}
    v_mov_b32 v{t1}, 0x40000000
    v_mov_b32 v{AV}, -1
    v_mov_b32 v{AV+1}, -1
    v_cndmask_b32 v{vZst}, v{vZst}, v{t1}, vcc
    v_mov_b32 v{AV+2}, -1
    v_mov_b32 v{AV+3}, -1
    s_waitcnt lgkmcnt(0)
    ''')
    for s_, p, n in [(sWS, 24, WS_BYTES), (sDBG, 22, 256), (sOUT, 20, 2097152), (sXI, 4, 2097152), (sWA, 6, 1572864),
                     (sWB, 14, 1572864), (sOA, 10, 524288), (sOB, 18, 524288)]:
        g(f's_mov_b32 s{s_}, s{p}\ns_mov_b32 s{s_+1}, s{p+1}\ns_mov_b32 s{s_+2}, {n}\ns_mov_b32 s{s_+3}, 0x20000')
    g.stamp(60, False)
    if 't' in opt:
        g(f'''
        v_lshlrev_b32 v{T+6}, 20, v0
        buffer_load_dword v{T+7}, v{T+6}, {srd(sWS)}, 0 offen
        buffer_load_dword v{T+7}, v{T+6}, {srd(sWB)}, 0 offen
        buffer_load_dword v{T+7}, v{T+6}, {srd(sOB)}, 0 offen
        buffer_load_dword v{T+7}, v{T+6}, {srd(sOA)}, 0 offen
        buffer_load_dword v{T+7}, v{T+6}, {srd(sOUT)}, 0 offen
        buffer_load_dword v{T+7}, v{T+6}, {srd(sDBG)}, 0 offen
        ''')
    if 't' in opt or 'c' in opt: g('s_waitcnt vmcnt(0)')
    def clr_x(fl, xoff=0):
        return f'''
        s_add_u32 s{sT0}, s{sT2}, s{sXwo}
        s_add_u32 s{sT1}, s{sT2}, s{sSwo}
        buffer_store_dwordx4 {v(AV,4)}, v{vL16}, {srd(sWS)}, s{sT0} offen{fl}
        buffer_store_dwordx4 {v(AV,4)}, v{vL16}, {srd(sWS)}, s{sT0} offen offset:1024{fl}
        buffer_store_dword v{AV}, v{vL16}, {srd(sWS)}, s{sT1} offen{fl}
        s_add_u32 s{sT0}, s{sT3}, s{sXwo}
        buffer_store_dwordx4 {v(AV,4)}, v{vL16}, {srd(sWS)}, s{sT0} offen{fl}
        buffer_store_dwordx4 {v(AV,4)}, v{vL16}, {srd(sWS)}, s{sT0} offen offset:1024{fl}
        '''
    def kv_store(data, zdata, add):
        return f'''
        s_lshl_b32 s{sT0}, s{sRG}, 9
        s_lshl_b32 s{sT1}, s{sRG}, 7
        s_add_u32 s{sT0}, s{sT0}, s{sKVr}
        s_add_u32 s{sT1}, s{sT1}, s{sKVr}
        s_add_u32 s{sT0}, s{sT0}, {add}
        s_add_u32 s{sT1}, s{sT1}, {add + 8192}
        buffer_store_dwordx2 {v(data,2)}, v{vL8}, {srd(sWS)}, s{sT0} offen sc1
        buffer_store_dwordx2 {v(zdata,2)}, v{vZst}, {srd(sWS)}, s{sT1} offen sc1
        '''
    g(f's_mov_b32 s{sT2}, s{sXr}\ns_mov_b32 s{sT3}, s{sOr}')
    g(clr_x(' sc1'))
    g(kv_store(AV, AV, 0)); g(kv_store(AV, AV, KVS))
    g(f'''
    v_lshl_add_u32 v{t0}, v{half}, 4, v{r_}
    v_lshlrev_b32 v{t0}, 6, v{t0}
    v_lshl_add_u32 v{t0}, v{fh}, 5, v{t0}
    v_lshl_add_u32 v{vAW}, v{c_}, 3, v{t0}
    v_add_u32 v{vAQ}, {LQ}, v{vAW}
    ; wo
    v_lshl_add_u32 v{t0}, v{half}, 2, v{r_}
    v_lshlrev_b32 v{t0}, 6, v{t0}
    v_and_b32 v{t1}, 1, v{c_}
    v_lshl_add_u32 v{t0}, v{t1}, 5, v{t0}
    v_lshl_add_u32 v{t0}, v{fh}, 4, v{t0}
    v_lshrrev_b32 v{t1}, 1, v{c_}
    v_lshl_add_u32 v{t0}, v{t1}, 3, v{t0}
    v_add_u32 v{vAO}, {LO}, v{t0}
    s_lshl_b32 s{sT0}, s{sW}, 9
    s_add_u32 s{sT0}, s{sT0}, {SCR}
    v_lshl_add_u32 v{t0}, v{tok}, 4, s{sT0}
    v_mul_u32_u24 v{t1}, {RS}, v{half}
    v_add_u32 v{vPHIw}, v{t0}, v{t1}
    v_mul_u32_u24 v{t1}, {PS}, v{half}
    v_add_u32 v{vVw}, v{t0}, v{t1}
    v_add_u32 v{vVw}, {4*RS}, v{vVw}
    v_mul_u32_u24 v{t1}, {RS}, v{half}
    v_lshl_add_u32 v{t1}, v{tok}, 4, v{t1}
    v_add_u32 v{vKVFr}, {SCR}, v{t1}
    s_mul_i32 s{sT0}, s{sW}, {RS}
    s_add_u32 s{sT0}, s{sT0}, {SCR}
    s_lshr_b32 s{sT1}, s{sW}, 1
    s_mul_i32 s{sT1}, s{sT1}, {RS}
    s_add_u32 s{sT1}, s{sT1}, {SCR + 4*RS}
    v_lshrrev_b32 v{t0}, 1, v{c_}
    v_and_b32 v{t1}, 1, v{c_}
    v_mul_u32_u24 v{vPHIr}, {PS}, v{t0}
    v_lshl_add_u32 v{vPHIr}, v{t1}, 3, v{vPHIr}
    v_lshl_add_u32 v{vPHIr}, v{l2}, 4, v{vPHIr}
    v_add_u32 v{vPHIr}, s{sT0}, v{vPHIr}
    v_mul_u32_u24 v{vVr}, {PS}, v{t1}
    v_lshl_add_u32 v{vVr}, v{t0}, 3, v{vVr}
    v_lshl_add_u32 v{vVr}, v{l2}, 4, v{vVr}
    v_add_u32 v{vVr}, s{sT1}, v{vVr}
    v_lshlrev_b32 v{vZw}, 9, v{t0}
    v_lshl_add_u32 v{vZw}, v{t1}, 3, v{vZw}
    v_lshl_add_u32 v{vZw}, v{l2}, 4, v{vZw}
    v_add_u32 v{vZw}, s{sT0}, v{vZw}
    v_add_u32 v{vZw}, 256, v{vZw}
    v_bfe_u32 v{t0}, v0, 3, 1
    v_lshlrev_b32 v{vKVFw}, 9, v{fh}
    v_lshl_add_u32 v{vKVFw}, v{t0}, 3, v{vKVFw}
    v_and_b32 v{t0}, 7, v0
    v_lshl_add_u32 v{t0}, v{t0}, 1, v{half}
    v_lshl_add_u32 v{vKVFw}, v{t0}, 4, v{vKVFw}
    v_add_u32 v{vKVFw}, s{sT0}, v{vKVFw}
    v_lshlrev_b32 v{vZld}, 7, v{l2}
    v_lshl_add_u32 v{vZld}, v{c_}, 3, v{vZld}
    v_add_u32 v{vZld}, 8192, v{vZld}
    v_lshlrev_b32 v{vProbe}, 11, v{l2}
    v_lshl_add_u32 v{vProbe}, v{c_}, 4, v{vProbe}
    v_add_u32 v{vProbe}, {1024 + 960 + 12}, v{vProbe}
    s_lshl_b32 s{sT0}, s{sW}, 11
    s_add_u32 s{sT0}, s{sT0}, {SCR}
    v_lshl_add_u32 v{AB+2}, v{tok}, 6, s{sT0}
    v_lshl_add_u32 v{AB+2}, v{half}, 5, v{AB+2}
    ''')
    for i in (1, 2, 3): g(f'v_mov_b32 v{BX+i}, 0')
    for i in range(8): g(f'v_mov_b32 v{CS+i}, 0')
    waddr_setup(g)
    g(f'''
    s_lshl_b32 s{sT0}, s{sRG}, 17
    s_lshl_b32 s{sT1}, s{sW}, 15
    s_add_u32 s{sT0}, s{sT0}, s{sT1}
    s_add_u32 s{sT0}, s{sT0}, s{sT3}
    s_lshl_b32 s{sT1}, s{sW}, 11
    s_add_u32 m0, s{sT1}, {SCR}
    s_nop 0
    buffer_load_dwordx4 v{T+7}, {srd(sXI)}, s{sT0} offen lds
    s_add_u32 s{sT0}, s{sT0}, {16*1024}
    s_add_u32 m0, s{sT1}, {SCR + 1024}
    s_nop 0
    buffer_load_dwordx4 v{T+7}, {srd(sXI)}, s{sT0} offen lds
    ''')
    nE0 = 2
    for t in 'kv':
        for j in range(2): dma_piece(g, t, j); nE0 += 1
    g(f'''
    s_and_b32 s{sT1}, s{sW}, 1
    s_cmp_eq_u32 s{sT1}, 0
    s_cselect_b32 s4, s8, s16
    s_cselect_b32 s5, s9, s17
    s_mov_b32 s6, 16384
    s_mov_b32 s7, 0x20000
    s_lshl_b32 s{sT1}, s{sT1}, 10
    s_add_u32 m0, s{sT1}, {WPH}
    s_lshl_b32 s{sT0}, s{sHP}, 10
    buffer_load_dwordx4 v{vL16}, s[4:7], s{sT0} offen lds
    ''')
    nE0 += 1
    g(f'''
    s_waitcnt vmcnt({nE0})
    s_barrier
    s_lshl_b32 s{sT2}, s{sRG}, 4
    s_add_u32 s{sT1}, s{sT2}, s{sHP}
    s_or_b32 s{sXCC}, s{sXCC}, 0x80
    v_mov_b32 v{AB+4}, s{sXCC}
    v_mov_b32 v{AB+5}, 0
    s_cmp_lg_u32 s{sW}, 0
    s_cbranch_scc1 Lnoflag
    s_mov_b64 exec, 1
    buffer_store_byte v{AB+4}, v{AB+5}, {srd(sDBG)}, s{sT1} offen
    s_mov_b64 exec, -1
    Lnoflag:
    ''')
    g.stamp(61, False)
    for t in 'kv':
        for j in range(2, 8): dma_piece(g, t, j)
    for t in 'qo':
        for j in range(8): dma_piece(g, t, j)
    g(f'''
    s_lshl_b32 s{sT2}, s{sRG}, 4
    s_mul_i32 s{sT3}, s{sXCC}, 0x01010101
    s_mov_b32 s{sCnt}, 0
    Lfpoll:
    buffer_load_dwordx4 {v(AB+8,4)}, v{AB+5}, {srd(sDBG)}, s{sT2} offen sc1
    s_waitcnt vmcnt(0)
    v_and_b32 v{AB+6}, v{AB+8}, v{AB+9}
    v_and_b32 v{AB+7}, v{AB+10}, v{AB+11}
    v_and_b32 v{AB+6}, v{AB+6}, v{AB+7}
    v_and_b32 v{AB+6}, 0x80808080, v{AB+6}
    v_cmp_ne_u32 vcc, 0x80808080, v{AB+6}
    s_cbranch_vccnz Lfretry
    v_xor_b32 v{AB+8}, s{sT3}, v{AB+8}
    v_xor_b32 v{AB+9}, s{sT3}, v{AB+9}
    v_xor_b32 v{AB+10}, s{sT3}, v{AB+10}
    v_xor_b32 v{AB+11}, s{sT3}, v{AB+11}
    v_or_b32 v{AB+8}, v{AB+8}, v{AB+9}
    v_or_b32 v{AB+10}, v{AB+10}, v{AB+11}
    v_or_b32 v{AB+8}, v{AB+8}, v{AB+10}
    v_and_b32 v{AB+8}, 0x0f0f0f0f, v{AB+8}
    s_nop 0
    v_readfirstlane_b32 s{sMode}, v{AB+8}
    s_cmp_lg_u32 s{sW}, 0
    s_cbranch_scc1 Lnolead
    s_cmp_eq_u32 s{sHP}, 0
    s_cselect_b32 s{sT0}, 0x40, 0
    s_or_b32 s{sT1}, s{sT0}, s{sMode}
    s_cmp_eq_u32 s{sT1}, 0
    s_cbranch_scc1 Lnolead
    v_or_b32 v{AB+4}, s{sT0}, v{AB+4}
    s_add_u32 s{sT1}, s{sT2}, s{sHP}
    s_mov_b64 exec, 1
    buffer_store_byte v{AB+4}, v{AB+5}, {srd(sDBG)}, s{sT1} offen sc1
    s_mov_b64 exec, -1
    Lnolead:
    ''')
    g.ool(f'''
    Lfretry:
    s_sub_u32 s{sBud}, s{sBud}, 1
    s_cbranch_scc1 Lexit
    s_add_u32 s{sCnt}, s{sCnt}, 1
    s_and_b32 s{sT0}, s{sCnt}, 7
    s_cmp_lg_u32 s{sT0}, 0
    s_cbranch_scc1 Lfpoll
    s_cmp_lg_u32 s{sW}, 0
    s_cbranch_scc1 Lfretry2
    s_add_u32 s{sT1}, s{sT2}, s{sHP}
    s_mov_b64 exec, 1
    buffer_store_byte v{AB+4}, v{AB+5}, {srd(sDBG)}, s{sT1} offen sc1
    s_mov_b64 exec, -1
    s_waitcnt vmcnt(0)
    buffer_wbl2 sc1
    s_waitcnt vmcnt(0)
    buffer_inv sc1
    s_waitcnt vmcnt(0)
    Lfretry2:
    s_sleep 8
    s_branch Lfpoll
    ''')
    g.stamp(62, False)
    g(f'ds_read_b128 {v(T,4)}, v{AB+2}\nds_read_b128 {v(T+4,4)}, v{AB+2} offset:16\ns_waitcnt lgkmcnt(0)')
    for i in range(8):
        g(f'v_lshlrev_b32 v{AK+2*i}, 16, v{T+i}\nv_and_b32 v{AK+2*i+1}, 0xffff0000, v{T+i}')
    for t in 'kvq': cs_partial(g, t, 0, X)
    g.stamp(63, False)

    g('.p2align 6\nLepi:')
    for i in range(8): g(f'v_cvt_pk_bf16_f32 v{T+i}, v{AK+2*i}, v{AK+2*i+1}')
    g(f'''
    v_min_u32 v{T+3}, -2, v{T+3}
    v_min_u32 v{T+7}, -2, v{T+7}
    s_add_u32 s{sT0}, s{sXr}, s{sXwo}
    s_add_u32 s{sT1}, s{sXr}, s{sSwo}
    ''')
    g.modal(lambda fl: f'''
    buffer_store_dwordx4 {v(T,4)}, v{vL16}, {srd(sWS)}, s{sT0} offen{fl}
    buffer_store_dwordx4 {v(T+4,4)}, v{vL16}, {srd(sWS)}, s{sT0} offen offset:1024{fl}
    ''')
    S1, S2 = AV, AV + 2
    g(f'v_pk_add_f32 {v(S1,2)}, {v(AK,2)}, {v(AK+2,2)}')
    g(f'v_pk_mul_f32 {v(S2,2)}, {v(AK,2)}, {v(AK,2)}')
    g(f'v_pk_fma_f32 {v(S2,2)}, {v(AK+2,2)}, {v(AK+2,2)}, {v(S2,2)}')
    for i in range(4, 16, 2):
        g(f'v_pk_add_f32 {v(S1,2)}, {v(S1,2)}, {v(AK+i,2)}')
        g(f'v_pk_fma_f32 {v(S2,2)}, {v(AK+i,2)}, {v(AK+i,2)}, {v(S2,2)}')
    g(f'''
    v_add_f32 v{S1}, v{S1}, v{S1+1}
    v_add_f32 v{S2}, v{S2}, v{S2+1}
    s_nop 1
    v_permlane32_swap_b32 v{S1}, v{S2}
    v_add_f32 v{S1}, v{S1}, v{S2}
    v_min_u32 v{S1}, -2, v{S1}
    ''')
    g.modal(lambda fl: f'buffer_store_dword v{S1}, v{vL16}, {srd(sWS)}, s{sT1} offen{fl}')
    g.stamp(0)
    for i in range(9): g(f's_add_u32 s{sOff+i}, s{sXr}, {4096*i}')
    for i in range(16): g(f'v_mov_b32 v{XO+i}, v{AK+i}')
    g('s_waitcnt lgkmcnt(0)\ns_barrier')
    refill(g, 'q', 0, X); refill(g, 'o', 0, X + 48)
    g(f'''
    s_and_b32 s{sT0}, s{sL}, 1
    s_lshl_b32 s{sT0}, s{sT0}, 10
    s_add_u32 s{sT0}, s{sT0}, {WPH - (LO >> 1)}
    v_and_b32 v{T+1}, 0xffffffc0, v{vAO}
    v_lshrrev_b32 v{T+1}, 1, v{T+1}
    v_and_b32 v{T+2}, 24, v{vAO}
    v_add3_u32 v{T}, v{T+1}, v{T+2}, s{sT0}
    ''')
    for h in range(2):
        for b in range(2): g(trr(WP + 4*h + 2*b, T, h * 512 + b * 256))
    g(f'''
    v_bfe_u32 v{T+1}, v{vL16}, 6, 1
    v_mul_u32_u24 v{T+1}, 0x8000, v{T+1}
    v_lshl_add_u32 v{T+1}, v{T+1}, 16, v{T+1}
    ''')
    cs_read(g, 'kv', AV)
    for i in range(8): g(f'v_xor_b32 v{WP+i}, v{T+1}, v{WP+i}')
    g.stamp(1)
    g('Lx_redo:')
    PF = 3
    def a_reads(s):
        slot = AB + 8 * (s & 3)
        return [trr(slot, vAW, woff(s, 0)), trr(slot + 2, vAW, woff(s, 1)),
                trr(slot + 4, vAW, LV + woff(s, 0)), trr(slot + 6, vAW, LV + woff(s, 1))]
    for s in range(PF):
        for x in a_reads(s): g(x)
    ST = X + 112
    g('Lx_spin:')
    for i in range(4): g(fragld(32 + i, ST + 4 * i))
    for j in range(W): g(fragld(j))
    g(f's_waitcnt vmcnt({W})')
    g(f'v_max3_u32 v{T}, v{ST}, v{ST+1}, v{ST+2}')
    g(f'v_max3_u32 v{T+1}, v{ST+3}, v{ST+4}, v{ST+5}')
    for i in range(6, 14, 4):
        g(f'v_max3_u32 v{T}, v{ST+i}, v{ST+i+1}, v{T}')
        g(f'v_max3_u32 v{T+1}, v{ST+i+2}, v{ST+i+3}, v{T+1}')
    g(f'v_max3_u32 v{T}, v{ST+14}, v{ST+15}, v{T}')
    g(f'v_max_u32 v{T}, v{T}, v{T+1}')
    g(f'v_cmp_eq_u32 vcc, -1, v{T}\ns_cbranch_vccnz Lx_retry')
    g.retry('Lx_retry', 'Lx_spin')
    ex = []
    for i in range(8): ex.append(f'v_add_f32 v{ST+i}, v{ST+i}, v{ST+8+i}')
    for i in range(4): ex.append(f'v_add_f32 v{ST+i}, v{ST+i}, v{ST+4+i}')
    ex += [f'v_add_f32 v{ST}, v{ST}, v{ST+2}', f'v_add_f32 v{ST+1}, v{ST+1}, v{ST+3}', f'v_add_f32 v{T}, v{ST}, v{ST+1}',
           f'v_mul_f32 v{T}, 0x3b000000, v{T}', f'v_mov_b32 v{T+1}, v{T}', 's_nop 0', 's_nop 0',
           f'v_permlane32_swap_b32 v{T}, v{T+1}',
           f'v_fma_f32 v{T+1}, -v{T}, v{T}, v{T+1}', f'v_max_f32 v{T+1}, 0, v{T+1}', f'v_add_f32 v{T+1}, 0x3727c5ac, v{T+1}',
           f'v_rsq_f32 v{vRstd}, v{T+1}', f'v_cvt_pk_bf16_f32 v{T+2}, -v{T}, -v{T}',
           f'v_mul_f32 v{vC}, 0x3fb8aa3b, v{vRstd}', f'v_lshlrev_b32 v{T+3}, 16, v{T+2}',
           f'v_add_f32 v{T+3}, v{T}, v{T+3}', f'v_cvt_pk_bf16_f32 v{T+3}, -v{T+3}, -v{T+3}',
           f'v_cndmask_b32 v{BX}, v{T+2}, v{T+3}, s[{sHalf}:{sHalf+1}]']
    for s in range(32):
        slot = AB + 8 * (s & 3)
        nv = min(W - 1, 31 - s); nl = 4 * min(PF - 1, 31 - s)
        g(f's_waitcnt vmcnt({nv}) lgkmcnt({nl})')
        rd = a_reads(s + PF) if s + PF < 32 else []
        g(mfma32(AK, slot, X + 4*s, '0' if s == 0 else None))
        for x in rd[:2]: g(x)
        if s + W < 32: g(fragld(s + W))
        for x in ex[4*s:4*s+2]: g(x)
        g(mfma32(AV, slot + 4, X + 4*s, '0' if s == 0 else None))
        for x in rd[2:]: g(x)
        for x in ex[4*s+2:4*s+4]: g(x)
        if s == 1: g(f'v_max_u32 v{vChk}, v{X+3}, v{X+7}')
        elif s & 1: g(f'v_max3_u32 v{vChk}, v{X+4*s-1}, v{X+4*s+3}, v{vChk}')
        if s == 10:
            g(mfma32(AK, CS, BX)); g(mfma32(AV, CS + 2, BX))
    g(f'v_cmp_eq_u32 vcc, -1, v{vChk}\ns_cbranch_vccnz Lx_bad')
    g.retry('Lx_bad', 'Lx_redo')
    g.stamp(2)
    g(f's_cmp_eq_u32 s{sL}, 0\ns_cbranch_scc1 Lcold0\nLcold0_back:')
    save = g.L; g.L = g.tail
    g('Lcold0:')
    waddr_setup(g)
    for j0 in (0, 2):
        for t in 'kvqo':
            for j in (range(2) if j0 == 0 else range(2, 8)): stash_load_piece(g, t, j)
    g('s_branch Lcold0_back')
    g.L = save
    g('s_nop 7')
    for i in range(8): g(f'v_cvt_pk_bf16_f32 v{T+i}, v{AK+2*i}, v{AK+2*i+1}')
    g(mfma32(AB, WP, T, '0'))
    g(f'v_mul_f32 v{AV}, v{AV}, v{vRstd}')
    g(mfma32(AB + 16, WP + 4, T + 4, '0'))
    for i in range(1, 16): g(f'v_mul_f32 v{AV+i}, v{AV+i}, v{vRstd}')
    for i in range(8): g(f'v_cvt_pk_bf16_f32 v{AV+i}, v{AV+2*i}, v{AV+2*i+1}')
    g(f'ds_write_b128 v{vVw}, {v(AV,4)}\nds_write_b128 v{vVw}, {v(AV+4,4)} offset:{RS}')
    ONES = AV + 8
    for i in range(4): g(f'v_mov_b32 v{ONES+i}, s{sOnes}')
    softmax2(g, AB, AK, [f'ds_write_b128 v{vPHIw}, {v(AK+8*h,4)} offset:{2*h*RS}\nds_write_b128 v{vPHIw}, {v(AK+8*h+4,4)} offset:{2*h*RS+PS}' for h in range(2)])
    g('s_waitcnt lgkmcnt(0)\ns_barrier')
    g.stamp(3)
    for tb in range(4):
        for rd in range(2): g(trr(AB + 8*tb + 2*rd, vPHIr, tb * 512 + rd * 256))
        for rd in range(2): g(trr(AB + 8*tb + 4 + 2*rd, vVr, tb * 512 + rd * 256))
        if tb == 2: g('s_waitcnt lgkmcnt(8)'); g(mfma16(AK, AB, AB + 4, '0')); g(mfma16(AK + 4, AB, ONES, '0'))
    for tb in range(1, 4):
        g(f's_waitcnt lgkmcnt({4 * (3 - tb)})')
        g(mfma16(AK, AB + 8*tb, AB + 8*tb + 4)); g(mfma16(AK + 4, AB + 8*tb, ONES))
    g('s_nop 6')
    g(f'''
    v_cvt_pk_bf16_f32 v{T+4}, v{AK}, v{AK+1}
    v_cvt_pk_bf16_f32 v{T+5}, v{AK+2}, v{AK+3}
    v_cvt_pk_bf16_f32 v{T+6}, v{AK+4}, v{AK+5}
    v_cvt_pk_bf16_f32 v{T+7}, v{AK+6}, v{AK+7}
    v_min_u32 v{T+4}, -2, v{T+4}
    v_min_u32 v{T+6}, -2, v{T+6}
    ''')
    g(kv_store(T + 4, T + 6, 0))
    g.stamp(4)
    for i in range(4): g(f'v_mov_b32 v{AV+i}, -1')
    g(f'''
    s_xor_b32 s{sXr}, s{sXr}, {XBS}
    s_mov_b32 s{sT2}, s{sXr}
    s_xor_b32 s{sT3}, s{sOr}, {OBS}
    ''')
    g.modal(clr_x)
    g(kv_store(AV, AV, 2 * KVS))
    cs_read(g, 'q', AK)
    def q_reads(s):
        slot = AB + 4 * (s & 7)
        return [trr(slot, vAQ, woff(s, 0)), trr(slot + 2, vAQ, woff(s, 1))]
    PQ = 5
    for s in range(PQ):
        for x in q_reads(s): g(x)
    g(mfma32(AV, CS + 4, BX, '0'))
    KVL = X; ZL = X + 32; KA = X + 34
    def kv_loads():
        o = []
        for i in range(8):
            o.append(f'buffer_load_dwordx4 {v(KVL+4*i,4)}, v{vL16}, {srd(sWS)}, s{sKVr if i < 4 else sT0} offen offset:{(i&3)*1024} sc1')
        o.append(f'buffer_load_dwordx2 {v(ZL,2)}, v{vZld}, {srd(sWS)}, s{sKVr} offen sc1')
        return o
    for s in range(32):
        g(f's_waitcnt lgkmcnt({2 * min(PQ - 1, 31 - s)})')
        g(mfma32(AV, AB + 4 * (s & 7), X + 4*s))
        if s + PQ < 32:
            for x in q_reads(s + PQ): g(x)
    g(f's_cmp_eq_u32 s{sL}, 0\ns_cbranch_scc1 Lgchk\nLgchk_back:')
    g.ool(f'''
    Lgchk:
    v_and_b32 v{T}, 0xf0, v{vL16}
    Lgchk2:
    buffer_load_ubyte v{T+1}, v{T}, {srd(sDBG)}, 0 offen sc1
    s_waitcnt vmcnt(0)
    v_and_b32 v{T+1}, 0x40, v{T+1}
    v_cmp_eq_u32 vcc, 0, v{T+1}
    s_cbranch_vccz Lgchk_back
    s_sub_u32 s{sBud}, s{sBud}, 1
    s_cbranch_scc1 Lexit
    s_and_b32 s{sT0}, s{sBud}, 15
    s_cmp_lg_u32 s{sT0}, 0
    s_cbranch_scc1 Lgchk2
    buffer_wbl2 sc1
    s_waitcnt vmcnt(0)
    buffer_inv sc1
    s_waitcnt vmcnt(0)
    s_branch Lgchk2
    ''')
    g(f's_add_u32 s{sT0}, s{sKVr}, 4096\ns_waitcnt vmcnt(7)')
    for x in kv_loads(): g(x)
    g.stamp(5)
    g('s_nop 1')
    for i in range(8): g(f'v_cvt_pk_bf16_f32 v{T+i}, v{AV+2*i}, v{AV+2*i+1}')
    g(mfma32(AB, WP, T, '0')); g('s_nop 0'); g(mfma32(AB + 16, WP + 4, T + 4, '0'))
    g('s_nop 10')
    softmax2(g, AB, AK)
    refill(g, 'k', 1, X + 64)
    g.stamp(6)
    g('Lkv_wait:')
    for i in range(8):
        g(f's_waitcnt vmcnt({8 - i})')
        for d in range(4):
            for hl in range(2):
                acc = KA + 2 * d + hl
                g(f'v_dot2_f32_bf16 v{acc}, v{KVL+4*i+d}, s{sSel0+hl}, {"0" if i == 0 else "v%d" % acc}')
        if i == 0: g(f'v_max_u32 v{vChk}, v{KVL}, v{KVL+2}')
        else: g(f'v_max3_u32 v{vChk}, v{KVL+4*i}, v{KVL+4*i+2}, v{vChk}')
    g(f'''
    s_waitcnt vmcnt(0)
    v_max_u32 v{vChk}, v{vChk}, v{ZL}
    v_cmp_eq_u32 vcc, -1, v{vChk}
    s_cbranch_vccnz Lkv_retry
    ds_write_b64 v{vZw}, {v(ZL,2)}
    ''')
    g.ool(f'Lkv_retry:\ns_sub_u32 s{sBud}, s{sBud}, 1\ns_cbranch_scc1 Lexit\ns_add_u32 s{sT0}, s{sKVr}, 4096')
    g.ool('\n'.join(kv_loads())); g.ool('s_branch Lkv_wait')
    for i in range(4): g(f'v_permlane32_swap_b32 v{KA+i}, v{KA+4+i}')
    g(f'''
    v_pk_add_f32 {v(KA,2)}, {v(KA,2)}, {v(KA+4,2)}
    v_pk_add_f32 {v(KA+2,2)}, {v(KA+2,2)}, {v(KA+6,2)}
    v_cvt_pk_bf16_f32 v{KA}, v{KA}, v{KA+1}
    v_cvt_pk_bf16_f32 v{KA+1}, v{KA+2}, v{KA+3}
    ds_write_b64 v{vKVFw}, {v(KA,2)}
    s_waitcnt lgkmcnt(0)
    s_barrier
    ''')
    g.stamp(7)
    KF = X + 48
    for h in range(2):
        for s in range(2): g(f'ds_read_b128 {v(KF+8*h+4*s,4)}, v{vKVFr} offset:{2*h*RS + 512*s}')
    g(f's_add_u32 s{sT0}, s{sOr}, s{sXwo}')
    for h in range(2):
        for s in range(2):
            g(f's_waitcnt lgkmcnt({3 - 2*h - s})')
            g(mfma32(AB + 16*h, KF + 8*h + 4*s, AK + 8*h + 4*s, '0' if s == 0 else None))
    g('s_nop 7')
    for h in range(2):
        D = AB + 16 * h
        if h == 1: g('s_nop 0')
        g(f'''
        v_pk_add_f32 {v(D+8,2)}, {v(D+8,2)}, {v(D+10,2)}
        v_pk_add_f32 {v(D+12,2)}, {v(D+12,2)}, {v(D+14,2)}
        v_pk_add_f32 {v(D+8,2)}, {v(D+8,2)}, {v(D+12,2)}
        v_add_f32 v{D+8}, v{D+8}, v{D+9}
        v_mov_b32 v{D+9}, v{D+8}
        s_nop 1
        v_permlane32_swap_b32 v{D+8}, v{D+9}
        v_add_f32 v{D+8}, v{D+8}, v{D+9}
        v_add_f32 v{D+8}, 0x358637bd, v{D+8}
        v_rcp_f32 v{D+8}, v{D+8}
        s_nop 0
        ''')
        for i in range(0, 8, 2): g(f'v_pk_mul_f32 {v(D+i,2)}, {v(D+i,2)}, {v(D+8,2)} op_sel_hi:[1,0]')
        for i in range(4): g(f'v_cvt_pk_bf16_f32 v{T+4*h+i}, v{D+2*i}, v{D+2*i+1}')
        g(f'v_min_u32 v{T+4*h+3}, -2, v{T+4*h+3}')
        g.modal(lambda fl: f'buffer_store_dwordx4 {v(T+4*h,4)}, v{vL16}, {srd(sWS)}, s{sT0} offen offset:{1024*h}{fl}')
    g.stamp(8)
    for i in range(8): g(f's_add_u32 s{sOff+i}, s{sOr}, {4096*i}')
    refill(g, 'v', 1, X + 64)
    g('s_waitcnt lgkmcnt(0)')
    g.stamp(9)
    g('Lo_redo:')
    def o_reads(s):
        slot = AB + 4 * (s & 7)
        return [trr(slot, vAO, (16*s) * 64), trr(slot + 2, vAO, (16*s + 8) * 64)]
    for s in range(PQ):
        for x in o_reads(s): g(x)
    g('Lo_spin:')
    g(f'buffer_load_dword v{vChk}, v{vProbe}, {srd(sWS)}, s{sOr} offen sc1')
    for j in range(W): g(fragld(j))
    g(f's_waitcnt vmcnt({W})\nv_cmp_eq_u32 vcc, -1, v{vChk}\ns_cbranch_vccnz Lo_retry')
    g.retry('Lo_retry', 'Lo_spin')
    for s in range(32):
        g(f's_waitcnt vmcnt({min(W - 1, 31 - s)}) lgkmcnt({2 * min(PQ - 1, 31 - s)})')
        g(mfma32(AK, AB + 4 * (s & 7), X + 4*s, v(XO, 16) if s == 0 else None))
        if s + W < 32: g(fragld(s + W))
        if s + PQ < 32:
            for x in o_reads(s + PQ): g(x)
        if s & 1: g(f'v_max3_u32 v{vChk}, v{X+4*s-1}, v{X+4*s+3}, v{vChk}')
    g(f'v_cmp_eq_u32 vcc, -1, v{vChk}\ns_cbranch_vccnz Lo_bad')
    g.retry('Lo_bad', 'Lo_redo')
    g.stamp(10)
    g(f'''
    s_xor_b32 s{sOr}, s{sOr}, {OBS}
    s_add_u32 s{sKVr}, s{sKVr}, {KVS}
    s_add_u32 s{sL}, s{sL}, 1
    s_nop 4
    s_cmp_lg_u32 s{sL}, 4
    s_cbranch_scc1 Lepi
    ''')
    for i in range(8): g(f'v_cvt_pk_bf16_f32 v{T+i}, v{AK+2*i}, v{AK+2*i+1}')
    g(f'''
    v_and_b32 v{AV}, 31, v0
    v_lshrrev_b32 v{AV+1}, 5, v0
    v_lshlrev_b32 v{AV}, 10, v{AV}
    v_lshl_add_u32 v{AV}, v{AV+1}, 5, v{AV}
    s_lshl_b32 s{sT0}, s{sRG}, 17
    s_lshl_b32 s{sT1}, s{sW}, 15
    s_add_u32 s{sT0}, s{sT0}, s{sT1}
    s_lshl_b32 s{sT1}, s{sHP}, 6
    s_add_u32 s{sT0}, s{sT0}, s{sT1}
    buffer_store_dwordx4 {v(T,4)}, v{AV}, {srd(sOUT)}, s{sT0} offen
    buffer_store_dwordx4 {v(T+4,4)}, v{AV}, {srd(sOUT)}, s{sT0} offen offset:16
    Lexit:
    ''')
    if stamps:
        g(f'''
        s_waitcnt vmcnt(0)
        s_memtime s[{sTm}:{sTm+1}]
        s_waitcnt lgkmcnt(0)
        v_writelane_b32 v{vStamp}, s{sTm}, 59
        v_writelane_b32 v{vStamp}, s{sBud}, 15
        v_writelane_b32 v{vStamp}, s{sMode}, 31
        s_memrealtime s[{sTm}:{sTm+1}]
        s_waitcnt lgkmcnt(0)
        v_writelane_b32 v{vStamp}, s{sTm}, 47
        v_writelane_b32 v{vStamp}, s100, 46
        s_lshl_b32 s{sT0}, s2, 2
        s_add_u32 s{sT0}, s{sT0}, s{sW}
        s_lshl_b32 s{sT0}, s{sT0}, 8
        s_add_u32 s{sT0}, s{sT0}, {STAMP}
        v_lshlrev_b32 v{T}, 2, v0
        buffer_store_dword v{vStamp}, v{T}, {srd(sWS)}, s{sT0} offen
        ''')
    g('Lexit2:\ns_endpgm')
    g.L += g.tail
    g('Lend:')
    g(f'''.section .rodata,"a"
.p2align 6
.amdhsa_kernel {NAME}_kernel
.amdhsa_next_free_vgpr 512
.amdhsa_next_free_sgpr 102
.amdhsa_accum_offset 256
.amdhsa_group_segment_fixed_size 0
.amdhsa_kernarg_size 88
.amdhsa_user_sgpr_count 2
.amdhsa_user_sgpr_kernarg_segment_ptr 1
.amdhsa_system_sgpr_workgroup_id_x 1
.end_amdhsa_kernel''')
    return g.L

if __name__ == '__main__':
    import argparse
    ap = argparse.ArgumentParser()
    ap.add_argument('-o', default=None); ap.add_argument('--stamps', action='store_true'); ap.add_argument('-W', type=int, default=8); ap.add_argument('--opt', default='')
    a = ap.parse_args()
    L = build(a.stamps, a.W, a.opt)
    bad = hazard.check(L)
    for b in bad: print('HAZARD', b)
    out = a.o or os.path.join(os.path.dirname(__file__), '..', 'cdna_kernels', NAME + '.s')
    open(out, 'w').write('\n'.join(L) + '\n')
    print('wrote', out, len(L), 'lines', len(bad), 'hazards')
```
